```python
import torch

def _softmax(x, axis=-1):
    return torch.softmax(x, dim=axis)
def _gelu(x):
    return torch.nn.functional.gelu(x, approximate="tanh")
def _silu(x):
    return torch.nn.functional.silu(x)
def _sigmoid(x):
    return torch.sigmoid(x)
def _layernorm(x, axis=-1, eps=1e-5):
    m = x.mean(dim=axis, keepdim=True)
    v = x.var(dim=axis, keepdim=True, unbiased=False)
    return (x - m) / torch.sqrt(v + eps)
def _scatter_add(tgt, idx, src, axis=0):
    return tgt.clone().index_add_(axis, idx, src)
def _segment_sum(src, seg, n):
    out = torch.zeros((n,) + src.shape[1:], dtype=src.dtype)
    return out.index_add_(0, seg, src)
def _pad(x, pw):
    flat = tuple(v for pair in reversed(pw) for v in pair)
    return torch.nn.functional.pad(x, flat)

kernel_name = 'recurrent_scan__ssm_conv_s4d__dense_activation_gelu__prompt'

def setup_inputs():

    _w = (lambda a: (lambda t: t.to(torch.bfloat16) if t.is_floating_point() else t)(torch.as_tensor(a)))
    def _A_setup():
        Bsz, L, D, N = 1, 2048, 640, 128
        return {
            "u": _w((lambda *s: torch.randn(*s, dtype=torch.bfloat16) * 0.05)(Bsz, L, D)),
            "log_A_real": _w((lambda *s: torch.randn(*s, dtype=torch.bfloat16) * 6.4)(D, N) * 0.5),
            "A_imag": _w((lambda *s: torch.randn(*s, dtype=torch.bfloat16) * 0.2)(D, N) * 3.14),
            "C_real": _w((lambda *s: torch.randn(*s, dtype=torch.bfloat16) * 0.4)(D, N) / N ** 0.5),
            "C_imag": _w((lambda *s: torch.randn(*s, dtype=torch.bfloat16) * 0.4)(D, N) / N ** 0.5),
            "log_dt": _w((lambda *s: torch.randn(*s, dtype=torch.bfloat16) * 0.2)(D) * 0.5 - 4.0),
            "D_skip": _w((lambda *s: torch.randn(*s, dtype=torch.bfloat16) * 0.2)(D)),
        }
    _A_in = _A_setup()

    def _B_setup():
        B, S, D, F = 1, 2048, 640, 1728
        return {
            "x": _w((lambda *s: torch.randn(*s, dtype=torch.bfloat16) * 0.05)(B, S, D)),
            "w1": _w((lambda *s: torch.randn(*s, dtype=torch.bfloat16) * 0.8)(D, F) * (D ** -0.5)),
            "b1": _w((lambda *s: torch.randn(*s, dtype=torch.bfloat16) * 0.1)(F) * 0.01),
            "w2": _w((lambda *s: torch.randn(*s, dtype=torch.bfloat16) * 0.1)(F, D) * (F ** -0.5)),
            "b2": _w((lambda *s: torch.randn(*s, dtype=torch.bfloat16) * 0.1)(D) * 0.01),
        }
    _B_in = _B_setup()

    return {
        "A_u": _A_in["u"],
        "A_log_A_real": _A_in["log_A_real"],
        "A_A_imag": _A_in["A_imag"],
        "A_C_real": _A_in["C_real"],
        "A_C_imag": _A_in["C_imag"],
        "A_log_dt": _A_in["log_dt"],
        "A_D_skip": _A_in["D_skip"],
        "B_x": _B_in["x"],
        "B_w1": _B_in["w1"],
        "B_b1": _B_in["b1"],
        "B_w2": _B_in["w2"],
        "B_b2": _B_in["b2"],
    }

def reference(A_u, A_log_A_real, A_A_imag, A_C_real, A_C_imag, A_log_dt, A_D_skip, B_x, B_w1, B_b1, B_w2, B_b2):
    def _A_ref(u, log_A_real, A_imag, C_real, C_imag, log_dt, D_skip):
        L = u.shape[1]
        dt = torch.exp(log_dt)
        A = -torch.exp(log_A_real) + 1j * A_imag
        C = (C_real + 1j * C_imag) * dt[:, None]
        pos = (lambda x, dt: x.to(dt))(torch.arange(L), log_dt.dtype)
        P = torch.exp((A * dt[:, None])[:, :, None] * pos[None, None, :])
        K = 2.0 * torch.einsum("dn,dnl->dl", C, P).real
        L2 = 2 * L
        u_t = (lambda x, *d: x.permute(*d))(u, 0, 2, 1)
        Kf = (lambda x, *a, **k: torch.fft.rfft(x.float(), *a, **k))(K, L2)
        Uf = (lambda x, *a, **k: torch.fft.rfft(x.float(), *a, **k))(u_t, L2)
        y = (lambda x, *a, **k: torch.fft.irfft(x, *a, **k).to(torch.bfloat16))(Uf * Kf[None, :, :], L2)[:, :, :L]
        y = (lambda x, *d: x.permute(*d))(y, 0, 2, 1)
        return y + u * D_skip[None, None, :]

    def _B_ref(x, w1, b1, w2, b2):
        h = torch.einsum("bsd,df->bsf", x, w1) + b1
        h = _gelu(h)
        return torch.einsum("bsf,fd->bsd", h, w2) + b2

    x = A_u
    xn = _layernorm(x, axis=-1)
    s = _A_ref(xn, A_log_A_real, A_A_imag, A_C_real, A_C_imag, A_log_dt, A_D_skip)
    g = _silu(_B_ref(xn, B_w1, B_b1, B_w2, B_b2))
    return x + s * g
```

```python
import re

TRANS = ('v_exp_f32', 'v_log_f32', 'v_rcp_f32', 'v_rsq_f32', 'v_sqrt_f32', 'v_sin_f32', 'v_cos_f32',
         'v_rcp_iflag_f32', 'v_exp_f16', 'v_log_f16', 'v_rcp_f16', 'v_rsq_f16', 'v_sqrt_f16', 'v_sin_f16', 'v_cos_f16')

def regs_of(tok):
    tok = tok.strip()
    tok = tok.lstrip('-')
    if tok.startswith('abs(') or tok.startswith('neg('):
        tok = tok[4:-1]
    if tok.startswith('|') and tok.endswith('|'):
        tok = tok[1:-1]
    m = re.fullmatch(r'([vsa])(\d+)', tok)
    if m:
        return {(m.group(1), int(m.group(2)))}
    m = re.fullmatch(r'([vsa])\[(\d+):(\d+)\]', tok)
    if m:
        return {(m.group(1), i) for i in range(int(m.group(2)), int(m.group(3)) + 1)}
    if tok in ('vcc', 'vcc_lo', 'vcc_hi'):
        return {('vcc', 0)}
    if tok in ('exec', 'exec_lo', 'exec_hi'):
        return {('exec', 0)}
    if tok == 'm0':
        return {('m0', 0)}
    return set()

class Ins:
    __slots__ = ('text', 'mn', 'ops', 'mods', 'kind', 'w', 'r', 'label', 'target', 'ws', 'srcA', 'srcB', 'srcC', 'passes', 'dpp', 'lds')
    def __init__(self, text):
        self.text = text
        self.label = None; self.target = None
        self.w = set(); self.r = set()
        self.kind = None; self.ws = 1
        self.srcA = self.srcB = self.srcC = set()
        self.passes = 0; self.dpp = False; self.lds = False
        t = text.split(';')[0].strip()
        if t.endswith(':') and ' ' not in t:
            self.kind = 'label'; self.label = t[:-1]; self.ws = 0; self.mn = ''; return
        if t == '' or t.startswith('.'):
            self.kind = 'dir'; self.ws = 0; self.mn = ''; return
        parts = t.split(None, 1)
        mn = parts[0]; self.mn = mn
        rest = parts[1] if len(parts) > 1 else ''
        ops = []; cur = ''; depth = 0
        for ch in rest:
            if ch == '[': depth += 1
            if ch == ']': depth -= 1
            if ch == ',' and depth == 0:
                ops.append(cur.strip()); cur = ''
            else:
                cur += ch
        if cur.strip(): ops.append(cur.strip())
        mods = ''
        if ops:
            last = ops[-1].split(None, 1)
            if len(last) > 1:
                ops[-1] = last[0]; mods = last[1]
        self.ops = ops; self.mods = mods
        base = re.sub(r'_(e32|e64|dpp|sdwa)$', '', mn)
        R = lambda i: regs_of(ops[i]) if i < len(ops) else set()
        allr = lambda a: set().union(*[R(i) for i in range(a, len(ops))]) if len(ops) > a else set()
        if mn.startswith('v_mfma') or mn.startswith('v_smfmac'):
            self.kind = 'mfma'
            self.w = R(0); self.srcA = R(1); self.srcB = R(2); self.srcC = R(3)
            self.r = self.srcA | self.srcB | self.srcC
            if '32x32x16' in mn or '32x32x8' in mn: self.passes = 8
            elif '16x16x32' in mn or '16x16x16' in mn: self.passes = 4
            elif '32x32x2_f32' in mn: self.passes = 16
            elif '16x16x4_f32' in mn: self.passes = 8
            elif '4x4x4' in mn: self.passes = 2
            else: raise ValueError('unknown mfma ' + mn)
        elif mn.startswith('v_'):
            self.kind = 'valu'
            self.dpp = ('_dpp' in mn) or ('row_' in mods) or ('quad_perm' in mods) or ('wave_' in mods) or ('row_' in rest and 'dpp' in mn)
            if base.startswith('v_cmpx'):
                self.w = R(0) | {('exec', 0)}; self.r = allr(1)
            elif base.startswith('v_cmp'):
                self.w = R(0); self.r = allr(1)
            elif base in ('v_readfirstlane_b32', 'v_readlane_b32'):
                self.w = R(0); self.r = allr(1)
            elif base in ('v_add_co_u32', 'v_sub_co_u32', 'v_addc_co_u32', 'v_subb_co_u32', 'v_subrev_co_u32', 'v_mad_u64_u32', 'v_div_scale_f32'):
                self.w = R(0) | R(1); self.r = allr(2)
            elif base in ('v_permlane32_swap_b32', 'v_permlane16_swap_b32', 'v_swap_b32'):
                self.w = R(0) | R(1); self.r = R(0) | R(1)
            elif base in ('v_fmac_f32', 'v_pk_fmac_f16', 'v_dot2c_f32_bf16', 'v_dot2c_f32_f16', 'v_writelane_b32', 'v_fmac_f16', 'v_mac_f32'):
                self.w = R(0); self.r = allr(0)
            elif base == 'v_nop':
                pass
            else:
                self.w = R(0); self.r = allr(1)
                if base == 'v_cndmask_b32' and len(ops) == 3: self.r |= {('vcc', 0)}
            if self.dpp or 'op_sel' in mods and base.startswith('v_cvt'):
                self.r |= {x for x in self.w if x[0] == 'v'} if self.dpp else set()
            self.r |= {('exec', 0)}
        elif mn.startswith('ds_'):
            self.kind = 'ds'
            if mn.startswith('ds_read') or mn.startswith('ds_bpermute') or mn.startswith('ds_permute') or mn.startswith('ds_swizzle') or '_rtn' in mn:
                self.w = R(0); self.r = allr(1)
                if '_d16' in mn: self.r |= R(0)
            else:
                self.r = allr(0)
        elif mn.startswith('buffer_') or mn.startswith('global_'):
            self.kind = 'vmem'
            self.lds = bool(re.search(r'\blds\b', mods)) or mn.startswith('global_load_lds')
            if mn.startswith('buffer_load') and not self.lds:
                self.w = R(0); self.r = allr(1)
            elif mn.startswith('global_load') and not self.lds:
                self.w = R(0); self.r = allr(1)
            elif 'atomic' in mn and 'sc0' in mods:
                self.w = R(0); self.r = allr(0)
            else:
                self.r = allr(0)
            if self.lds: self.r |= {('m0', 0)}
        elif mn.startswith('s_'):
            self.kind = 'salu'
            if mn == 's_nop':
                self.ws = int(ops[0], 0) + 1
            elif mn.startswith('s_cbranch') or mn == 's_branch':
                self.kind = 'branch'; self.target = ops[0]
            elif mn in ('s_waitcnt', 's_barrier', 's_endpgm', 's_setprio', 's_sleep'):
                pass
            elif mn.startswith('s_cmp') or mn.startswith('s_bitcmp'):
                self.r = allr(0)
            elif mn.startswith('s_load') or mn.startswith('s_buffer_load') or mn.startswith('s_memtime') or mn.startswith('s_memrealtime'):
                self.kind = 'smem'; self.w = R(0); self.r = allr(1)
            elif 'saveexec' in mn:
                self.w = R(0) | {('exec', 0)}; self.r = allr(1) | {('exec', 0)}
            else:
                self.w = R(0); self.r = allr(1)
                if mn in ('s_addk_i32', 's_mulk_i32'): self.r |= R(0)
        else:
            raise ValueError('unknown instr: ' + text)

def need(prod, cons):
    n = 0
    pv = {x for x in prod.w if x[0] in 'va' and len(x[0]) == 1}
    ps = {x for x in prod.w if x[0] in ('s', 'vcc')}
    if prod.kind == 'valu':
        cmn = re.sub(r'_(e32|e64|dpp|sdwa)$', '', cons.mn)
        if cons.kind == 'mfma' and (pv & cons.r): n = max(n, 2)
        if cons.kind == 'mfma' and ('exec', 0) in prod.w: n = max(n, 4)
        if cons.kind == 'valu':
            if cons.dpp and (pv & cons.r): n = max(n, 2)
            if cons.dpp and ('exec', 0) in prod.w: n = max(n, 5)
            if cmn in ('v_readfirstlane_b32', 'v_readlane_b32') and (pv & cons.r): n = max(n, 1)
            if cmn.startswith('v_permlane') and (pv & cons.r): n = max(n, 2)
            if cmn.startswith('v_permlane') and ('exec', 0) in prod.w: n = max(n, 4)
            if re.sub(r'_(e32|e64)$', '', prod.mn) in TRANS and cmn not in TRANS and (pv & cons.r): n = max(n, 1)
            if re.sub(r'_(e32|e64)$', '', prod.mn) in TRANS and cmn in TRANS and (pv & cons.r): n = max(n, 1)
            if ps & cons.r:
                n = max(n, 2)
                if cmn in ('v_readlane_b32', 'v_writelane_b32'): n = max(n, 4)
                if cmn == 'v_div_fmas_f32': n = max(n, 4)
            if ('exec', 0) in prod.w and cmn in ('v_readlane_b32', 'v_readfirstlane_b32', 'v_writelane_b32'): n = max(n, 4)
            if ('op_sel' in prod.mods or 'sdwa' in prod.mn or 'dst_sel' in prod.mods) and not prod.mn.startswith('v_pk') and (pv & (cons.r | cons.w)): n = max(n, 1)
        if cons.kind == 'vmem' and (ps & cons.r): n = max(n, 5)
        if cons.kind in ('salu', 'branch', 'smem') and (ps & cons.r): n = max(n, 4)
        if cons.kind == 'branch' and cons.mn in ('s_cbranch_vccz', 's_cbranch_vccnz') and ('vcc', 0) in prod.w: n = max(n, 5)
        if cons.kind == 'branch' and cons.mn in ('s_cbranch_execz', 's_cbranch_execnz') and ('exec', 0) in prod.w: n = max(n, 5)
    if prod.kind == 'mfma':
        P = prod.passes
        tab = lambda a2, a4, a8, a16: {2: a2, 4: a4, 8: a8, 16: a16}[P]
        if cons.kind == 'mfma':
            if pv & cons.srcC:
                if cons.srcC == prod.w and cons.passes == P: n = max(n, tab(2, 0, 0, 0))
                else: n = max(n, tab(4, 6, 10, 18))
            if pv & (cons.srcA | cons.srcB): n = max(n, tab(5, 8, 12, 20))
            if (pv & cons.w) and not (pv & cons.srcC): n = max(n, tab(5, 8, 12, 20))
        else:
            if cons.kind in ('valu', 'ds', 'vmem') and (pv & (cons.r | cons.w)): n = max(n, tab(5, 8, 12, 20))
        if cons.kind == 'valu' and (prod.srcC & cons.w): n = max(n, tab(1, 3, 7, 15))
        if cons.kind in ('ds', 'vmem') and (prod.srcC & cons.w): n = max(n, tab(1, 3, 7, 15))
    if prod.kind == 'salu':
        if ('m0', 0) in prod.w and ((cons.kind == 'vmem' and cons.lds) or cons.mn.startswith('s_sendmsg') or 'addtid' in cons.mn): n = max(n, 1)
    if prod.kind == 'vmem' and ('store' in prod.mn) and ('x4' in prod.mn or 'x3' in prod.mn):
        data = regs_of(prod.ops[0]) if prod.mn.startswith('buffer') else regs_of(prod.ops[1])
        if data & cons.w: n = max(n, 2 if cons.kind == 'valu' else 1)
    if prod.kind == 'ds' and prod.mn.startswith('ds_write') and ('b128' in prod.mn or 'b96' in prod.mn):
        pass
    return n

MAXW = 21

class Asm:
    def __init__(self):
        self.lines = []
    def __call__(self, s, *a):
        for ln in s.split('\n'):
            if ln.strip() == '': continue
            self.lines.append(ln.strip())
    def raw(self, s):
        self.lines.append(s)
    def label(self, l):
        self.lines.append(l + ':')
    def comment(self, s):
        self.lines.append('; ' + s)

def pad_hazards(lines, verbose=False):
    ins = [Ins(l) if not l.startswith(';') else None for l in lines]
    items = [(l, i) for l, i in zip(lines, ins)]
    total_added = 0
    changed = True
    it = 0
    while changed:
        changed = False; it += 1
        code = [x for x in items]
        labels = {}
        for idx, (l, i) in enumerate(code):
            if i is not None and i.kind == 'label': labels[i.label] = idx
        preds_branch = {}
        for idx, (l, i) in enumerate(code):
            if i is not None and i.kind == 'branch' and i.target in labels:
                preds_branch.setdefault(labels[i.target], []).append(idx)
        inserts = {}
        for idx, (l, c) in enumerate(code):
            if c is None or c.kind in ('label', 'dir'): continue
            if c.mn == 's_nop': continue
            req = 0
            stack = [(idx - 1, 0)]
            seen = {}
            while stack:
                j, dist = stack.pop()
                while j >= 0 and dist < MAXW:
                    if seen.get(j, 99) <= dist: break
                    seen[j] = dist
                    lj, p = code[j]
                    if p is None: j -= 1; continue
                    if p.kind == 'label':
                        for b in preds_branch.get(j, []):
                            stack.append((b, dist))
                        j -= 1; continue
                    if p.kind == 'dir': j -= 1; continue
                    if p.kind == 'branch' and p.mn == 's_branch' and j != idx and dist == dist:
                        pass
                    if p.mn == 's_endpgm': break
                    n = need(p, c)
                    if n > dist: req = max(req, n - dist)
                    dist += p.ws
                    j -= 1
            if req > 0: inserts[idx] = req
        if inserts:
            changed = True
            new = []
            for idx, x in enumerate(code):
                if idx in inserts:
                    k = inserts[idx]; total_added += k
                    while k > 0:
                        m = min(k, 16)
                        t = f's_nop {m-1}'
                        new.append((t, Ins(t))); k -= m
                new.append(x)
            items = new
        if it > 20: raise RuntimeError('hazard padding did not converge')
    if verbose: print('hazard nops added (wait states):', total_added)
    return [l for l, i in items]
```

```python
from asmlib import *

L, D, N, F = 2048, 640, 128, 1728
KA = dict(x=0, logA=8, Aim=16, Cre=24, Cim=32, logdt=40, dskip=48, bx=56, w1=64, b1=72, w2=80, b2=88, out=96, dbg=104, ws=112)
WS_H    = 0x0000000; SZ_H = L * F * 2
WS_XNT  = 0x0700000; SZ_XNT = D * L * 2
WS_ST   = 0x0A00000; SZ_ST = D * L * 2
KR_PITCH = 4160
WS_KR   = 0x0D00000; SZ_KR = D * KR_PITCH
WS_W2F  = 0x1000000; SZ_W2F = 8 * 54 * 5 * 1024
WS_STAT = 0x1300000; SZ_STAT = L * 8
WS_CS   = 0x1310000; SZ_CS = 1792 * 4

def srd(a, s, base_lo, base_hi, nbytes, off=0):
    if off:
        a(f's_add_u32 s{s}, s{base_lo}, {off}')
        a(f's_addc_u32 s{s+1}, s{base_hi}, 0')
    else:
        a(f's_mov_b32 s{s}, s{base_lo}')
        a(f's_mov_b32 s{s+1}, s{base_hi}')
    a(f's_mov_b32 s{s+2}, {nbytes}')
    a(f's_mov_b32 s{s+3}, 0x00020000')

def kernel_text(name, body_lines, vgprs, sgprs=102, accum=None):
    body = pad_hazards(body_lines)
    if accum is None: accum = (vgprs + 3) // 4 * 4
    o = []
    o.append(f'.globl {name}')
    o.append('.p2align 8')
    o.append(f'.type {name},@function')
    o.append(f'{name}:')
    o += ['  ' + l if not l.endswith(':') else l for l in body]
    return o

def descriptor(name, vgprs, sgprs=102, accum=None):
    if accum is None: accum = min(256, (vgprs + 3) // 4 * 4)
    return [f'.amdhsa_kernel {name}',
            f'  .amdhsa_next_free_vgpr {vgprs}',
            f'  .amdhsa_next_free_sgpr {sgprs}',
            f'  .amdhsa_accum_offset {accum}',
            '  .amdhsa_group_segment_fixed_size 0',
            '  .amdhsa_kernarg_size 120',
            '  .amdhsa_user_sgpr_count 2',
            '  .amdhsa_user_sgpr_kernarg_segment_ptr 1',
            '  .amdhsa_system_sgpr_workgroup_id_x 1',
            '  .amdhsa_float_denorm_mode_32 3',
            '.end_amdhsa_kernel']

HEADER = open('recurrent_scan__ssm_conv_s4d__dense_activation_gelu__prompt.s.ref').read().split('; Override launch')[0]

def assemble_file(kernels, launches):
    o = [HEADER.rstrip()]
    for (n, g, b, lds) in launches:
        o.append(f'; @launch kernel={n} grid=({g},1,1) block=({b},1,1) lds={lds}')
    o.append('.amdgcn_target "amdgcn-amd-amdhsa--gfx950"')
    o.append('.text')
    for (n, body, vg, sg, ac) in kernels:
        o += kernel_text(n, body, vg, sg, ac)
    o.append('.section .rodata,"a"')
    for (n, body, vg, sg, ac) in kernels:
        o.append('.p2align 6')
        o += descriptor(n, vg, sg, ac)
    return '\n'.join(o) + '\n'

WS_DBG = 0x1380000
class Stamps:
    def __init__(self, a, on, base=70):
        self.a = a; self.on = on; self.n = 0; self.base = base
    def stamp(self, real=False):
        if not self.on: return
        r = self.base + 2 * self.n
        self.a(f's_memrealtime s[{r}:{r+1}]' if real else f's_memtime s[{r}:{r+1}]')
        self.n += 1
    def dump(self, ws_lo, ws_hi, s_wave=None, slot_expr='s2'):
        if not self.on: return
        a = self.a
        a('s_waitcnt lgkmcnt(0)')
        srd(a, 96, ws_lo, ws_hi, 0x80000, WS_DBG)
        a(f's_lshl_b32 s68, {slot_expr}, 3')
        if s_wave is not None: a(f's_add_u32 s68, s68, s{s_wave}')
        a('s_lshl_b32 s68, s68, 7')
        a('v_mov_b32 v1, 0')
        for i in range(self.n):
            r = self.base + 2 * i
            a(f'v_mov_b32 v2, s{r}')
            a(f'v_mov_b32 v3, s{r+1}')
            a(f'buffer_store_dwordx2 v[2:3], v1, s[96:99], s68 offen offset:{8*i}')
            a('s_nop 1')
        a('s_waitcnt vmcnt(0)')
```

```python
from common import *

CV_U = 0
CV_KA = 4608
CV_KB = CV_KA + 4160 + 64
CV_WAVE = 13312

def conv_layout():
    ka = 4608
    kb = ka + 4160
    while ((kb - ka) // 4) % 32 != 16: kb += 4
    assert kb % 16 == 0
    return ka, kb
CV_KA, CV_KB = conv_layout()
assert CV_KB + 4160 <= CV_WAVE, (CV_KB, CV_WAVE)

def gen_conv_body(a, P, s_ch, s_ldsbase, sXNT, sKR, sST, sDS, uniq, st_=None):
    v = P['v0']
    vL16 = v; vAU = v + 1; vAK = [v + 2, v + 3, v + 4, v + 5]; vT = v + 6; vT2 = v + 7
    ACC = v + 8
    AF = ACC + 32
    BF = AF + 32
    X = AF + 128
    s0, s1, s2, s3 = P['s0'], P['s0'] + 1, P['s0'] + 2, P['s0'] + 3
    a(f'v_lshlrev_b32 v{vL16}, 4, v2')
    a(f's_lshl_b32 s{s0}, s{s_ch}, 12')
    for i in range(4):
        a(f's_add_u32 m0, s{s_ldsbase}, {CV_U + 512 + 1024*i}')
        a(f'buffer_load_dwordx4 v{vL16}, s[{sXNT}:{sXNT+3}], s{s0} offen offset:0 lds' if i == 0 else
          f's_add_u32 s{s1}, s{s0}, {1024*i}\nbuffer_load_dwordx4 v{vL16}, s[{sXNT}:{sXNT+3}], s{s1} offen lds')
    a(f's_mul_i32 s{s0}, s{s_ch}, {KR_PITCH}')
    for cp, dst in ((0, CV_KA), (1, CV_KB)):
        for i in range(5):
            if i == 4:
                a(f's_mov_b64 exec, 0xf')
            a(f's_add_u32 m0, s{s_ldsbase}, {dst + 1024*i}')
            a(f's_add_u32 s{s1}, s{s0}, {1024*i + 2*cp}')
            a(f'buffer_load_dwordx4 v{vL16}, s[{sKR}:{sKR+3}], s{s1} offen lds')
        a('s_mov_b64 exec, -1')
    a(f's_lshl_b32 s{s1}, s{s_ch}, 1')
    a(f'v_mov_b32 v{vT}, 0')
    a(f'buffer_load_ushort v{X+15}, v{vT}, s[{sDS}:{sDS+3}], s{s1} offen')
    a(f'v_mov_b32 v{X}, 0\nv_mov_b32 v{X+1}, 0\nv_mov_b32 v{X+2}, 0\nv_mov_b32 v{X+3}, 0')
    a(f'v_add_u32 v{vT}, s{s_ldsbase}, v{vL16}')
    a('s_mov_b32 exec_hi, 0')
    a(f'ds_write_b128 v{vT}, v[{X}:{X+3}] offset:{CV_U}')
    a('s_mov_b64 exec, -1')
    a(f'v_and_b32 v{vT}, 15, v2')
    a(f'v_lshrrev_b32 v{vT2}, 4, v2')
    a(f'v_lshlrev_b32 v{vAU}, 5, v{vT}')
    a(f'v_lshl_add_u32 v{vAU}, v{vT2}, 4, v{vAU}')
    a(f's_add_u32 s{s1}, s{s_ldsbase}, {CV_U + 512 - 32}')
    a(f'v_add_u32 v{vAU}, s{s1}, v{vAU}')
    a(f'v_and_b32 v{X}, 1, v{vT}')
    a(f'v_mov_b32 v{X+1}, {CV_KB}')
    a(f'v_mov_b32 v{X+2}, {CV_KA}')
    a(f'v_cmp_eq_u32 vcc, 1, v{X}')
    a(f'v_cndmask_b32 v{X+1}, v{X+1}, v{X+2}, vcc')
    a(f'v_lshrrev_b32 v{X}, 1, v{vT}')
    a(f'v_lshlrev_b32 v{X}, 2, v{X}')
    a(f'v_sub_u32 v{X+1}, v{X+1}, v{X}')
    a(f'v_lshl_add_u32 v{X+1}, v{vT2}, 4, v{X+1}')
    for p in range(4):
        a(f's_add_u32 s{s1}, s{s_ldsbase}, {4092 - 32 - 512*(2*p+1)}')
        a(f'v_add_u32 v{vAK[p]}, s{s1}, v{X+1}')
    for i in range(32): a(f'v_mov_b32 v{ACC+i}, 0')
    a('s_waitcnt vmcnt(0)')
    if st_: st_.stamp()
    a(f'v_lshlrev_b32 v{X+15}, 16, v{X+15}')
    def reads(mu):
        buf = (mu & 1) * 64
        out = []
        for r in range(8):
            p = r // 2
            o = 128 if r % 2 == 0 else 0
            d = AF + buf + 4 * r
            out.append(f'ds_read2_b32 v[{d}:{d+1}], v{vAK[p]} offset0:{o} offset1:{o+1}')
            out.append(f'ds_read2_b32 v[{d+2}:{d+3}], v{vAK[p]} offset0:{o+2} offset1:{o+3}')
            d = AF + buf + 32 + 4 * r
            out.append(f'ds_read_b128 v[{d}:{d+3}], v{vAU} offset:{512*r}')
        return out
    def step_addr():
        for p in range(4): a(f'v_subrev_u32 v{vAK[p]}, 64, v{vAK[p]}')
        a(f'v_subrev_u32 v{vAU}, 64, v{vAU}')
    for x in reads(0): a(x)
    step_addr()
    for mu in range(8):
        buf = (mu & 1) * 64
        nxt = reads(mu + 1) if mu < 7 else []
        a('s_waitcnt lgkmcnt(0)')
        order = [(r, dl) for n in range(8) for r in range(n + 1) for dl in [n - r]]
        order = sorted(order, key=lambda t: (t[0], t[1]))
        k = 0
        for i, (r, dl) in enumerate(order):
            n = r + dl
            c = ACC + 4 * n
            a(f'v_mfma_f32_16x16x32_bf16 v[{c}:{c+3}], v[{AF+buf+4*r}:{AF+buf+4*r+3}], v[{AF+buf+32+4*dl}:{AF+buf+35+4*dl}], v[{c}:{c+3}]')
            if k < len(nxt):
                a(nxt[k]); k += 1
            if i == 23 and mu < 6: step_addr()
        assert k == len(nxt)
    if st_: st_.stamp()
    a(f'v_lshlrev_b32 v{vAU}, 5, v{vT}')
    a(f'v_lshl_add_u32 v{vAU}, v{vT2}, 3, v{vAU}')
    a(f's_add_u32 s{s1}, s{s_ldsbase}, {CV_U + 512}')
    a(f'v_add_u32 v{vAU}, s{s1}, v{vAU}')
    for n in range(8):
        a(f'ds_read_b64 v[{AF+2*n}:{AF+2*n+1}], v{vAU} offset:{512*n}')
    a('s_waitcnt lgkmcnt(0)')
    for n in range(8):
        c = ACC + 4 * n; u = AF + 2 * n; t = BF
        a(f'v_lshlrev_b32 v{t}, 16, v{u}')
        a(f'v_and_b32 v{t+1}, 0xffff0000, v{u}')
        a(f'v_lshlrev_b32 v{t+2}, 16, v{u+1}')
        a(f'v_and_b32 v{t+3}, 0xffff0000, v{u+1}')
        for r in range(4): a(f'v_mul_f32 v{t+r}, v{X+15}, v{t+r}')
        a(f'v_cvt_pk_bf16_f32 v{t+4}, v{t}, v{t+1}')
        a(f'v_cvt_pk_bf16_f32 v{t+5}, v{t+2}, v{t+3}')
        a(f'v_cvt_pk_bf16_f32 v{t+6}, v{c}, v{c+1}')
        a(f'v_cvt_pk_bf16_f32 v{t+7}, v{c+2}, v{c+3}')
        a(f'v_lshlrev_b32 v{t}, 16, v{t+4}')
        a(f'v_and_b32 v{t+1}, 0xffff0000, v{t+4}')
        a(f'v_lshlrev_b32 v{t+2}, 16, v{t+5}')
        a(f'v_and_b32 v{t+3}, 0xffff0000, v{t+5}')
        a(f'v_lshlrev_b32 v{c}, 16, v{t+6}')
        a(f'v_and_b32 v{c+1}, 0xffff0000, v{t+6}')
        a(f'v_lshlrev_b32 v{c+2}, 16, v{t+7}')
        a(f'v_and_b32 v{c+3}, 0xffff0000, v{t+7}')
        a(f'v_pk_add_f32 v[{c}:{c+1}], v[{c}:{c+1}], v[{t}:{t+1}]')
        a(f'v_pk_add_f32 v[{c+2}:{c+3}], v[{c+2}:{c+3}], v[{t+2}:{t+3}]')
        a(f'v_cvt_pk_bf16_f32 v{u}, v{c}, v{c+1}')
        a(f'v_cvt_pk_bf16_f32 v{u+1}, v{c+2}, v{c+3}')
        a(f'ds_write_b64 v{vAU}, v[{u}:{u+1}] offset:{512*n}')
    a('s_waitcnt lgkmcnt(0)')
    a(f's_add_u32 s{s1}, s{s_ldsbase}, {CV_U + 512}')
    a(f'v_add_u32 v{vT}, s{s1}, v{vL16}')
    for i in range(4):
        a(f'ds_read_b128 v[{AF+4*i}:{AF+4*i+3}], v{vT} offset:{1024*i}')
    a(f's_lshl_b32 s{s0}, s{s_ch}, 12')
    for i in range(4):
        a(f's_waitcnt lgkmcnt({3-i})')
        a(f'buffer_store_dwordx4 v[{AF+4*i}:{AF+4*i+3}], v{vL16}, s[{sST}:{sST+3}], s{s0} offen offset:{1024*i}')
    return X + 16

def gen_conv(name='conv_kernel', nwg=160, stamps=False):
    a = Asm()
    st_ = Stamps(a, stamps)
    sXNT, sKR, sST, sDS = 8, 12, 16, 20
    s_wave, s_ch, s_lds = 32, 33, 34
    a(f's_cmp_ge_u32 s2, {nwg}')
    a('s_cbranch_scc1 L_cv_end')
    st_.stamp(True); st_.stamp()
    a(f's_load_dwordx2 s[4:5], s[0:1], {KA["ws"]}')
    a(f's_load_dwordx2 s[6:7], s[0:1], {KA["dskip"]}')
    a('v_lshrrev_b32 v1, 6, v0')
    a('v_and_b32 v2, 63, v0')
    a(f'v_readfirstlane_b32 s{s_wave}, v1')
    a(f's_lshl_b32 s{s_ch}, s2, 2')
    a(f's_add_u32 s{s_ch}, s{s_ch}, s{s_wave}')
    a(f's_mul_i32 s{s_lds}, s{s_wave}, {CV_WAVE}')
    a('s_waitcnt lgkmcnt(0)')
    srd(a, sXNT, 4, 5, SZ_XNT, WS_XNT)
    srd(a, sKR, 4, 5, SZ_KR, WS_KR)
    srd(a, sST, 4, 5, SZ_ST, WS_ST)
    srd(a, sDS, 6, 7, D * 2)
    top = gen_conv_body(a, dict(v0=4, s0=40), s_ch, s_lds, sXNT, sKR, sST, sDS, 'cv', st_)
    st_.stamp()
    a('s_waitcnt vmcnt(0)')
    st_.stamp(); st_.stamp(True)
    st_.dump(4, 5, s_wave)
    a('L_cv_end:')
    a('s_endpgm')
    return a.lines, top

if __name__ == '__main__':
    import sys
    lines, vg = gen_conv(stamps=len(sys.argv) > 1)
    txt = assemble_file([('conv_kernel', lines, vg, 102, None)], [('conv_kernel', 160, 256, 4 * CV_WAVE)])
    open('conv.s', 'w').write(txt)
    print(vg, CV_KA, CV_KB, 4 * CV_WAVE)
```

```python
from common import *
import struct
def f2u(x): return struct.unpack('<I', struct.pack('<f', x))[0]

G1_NS = 4
G1_STAGE = 32768
G1_X = 16384
G1_LDS = G1_NS * G1_STAGE

def gen_g1(name='g1_kernel', nwg=256, stamps=False):
    a = Asm()
    st_ = Stamps(a, stamps)
    sX, sW, sH, sST, sCS, sB1 = 8, 12, 16, 20, 24, 28
    s_wave, s_rt, s_ct, s_t0, s_t1 = 32, 33, 34, 35, 36
    s_wbase, s_xbase = 40, 41
    a(f's_cmp_ge_u32 s2, {nwg}')
    a('s_cbranch_scc1 L_g1_end')
    st_.stamp(True); st_.stamp()
    a(f's_load_dwordx2 s[4:5], s[0:1], {KA["ws"]}')
    a(f's_load_dwordx2 s[6:7], s[0:1], {KA["x"]}')
    a(f's_load_dwordx4 s[44:47], s[0:1], {KA["w1"]}')
    a('v_lshrrev_b32 v1, 6, v0')
    a('v_and_b32 v2, 63, v0')
    a(f'v_readfirstlane_b32 s{s_wave}, v1')
    a(f's_and_b32 s{s_t0}, s2, 7')
    a(f's_lshr_b32 s{s_t1}, s2, 3')
    a(f's_lshr_b32 s{s_rt}, s{s_t0}, 1')
    a(f's_lshl_b32 s{s_rt}, s{s_rt}, 2')
    a(f's_and_b32 s37, s{s_t1}, 3')
    a(f's_add_u32 s{s_rt}, s{s_rt}, s37')
    a(f's_and_b32 s{s_ct}, s{s_t0}, 1')
    a(f's_lshl_b32 s{s_ct}, s{s_ct}, 3')
    a(f's_lshr_b32 s37, s{s_t1}, 2')
    a(f's_add_u32 s{s_ct}, s{s_ct}, s37')
    vWO = 4
    vXO = 8
    T = 9
    for j in range(4):
        a(f's_lshl_b32 s38, s{s_wave}, 6')
        a(f's_add_u32 s38, s38, {256*j}')
        a(f'v_add_u32 v{T}, s38, v2')
        a(f'v_mul_u32_u24 v{T+1}, 8739, v{T}')
        a(f'v_lshrrev_b32 v{T+1}, 20, v{T+1}')
        a(f'v_mul_u32_u24 v{T+2}, 120, v{T+1}')
        a(f'v_sub_u32 v{T+2}, v{T}, v{T+2}')
        a(f'v_mul_u32_u24 v{T+3}, 4682, v{T+2}')
        a(f'v_lshrrev_b32 v{T+3}, 16, v{T+3}')
        a(f'v_mul_u32_u24 v{T+4}, 14, v{T+3}')
        a(f'v_sub_u32 v{T+4}, v{T+2}, v{T+4}')
        a(f'v_lshl_add_u32 v{T+3}, v{T+1}, 3, v{T+3}')
        a(f'v_mul_u32_u24 v{T+3}, 3456, v{T+3}')
        a(f'v_lshl_add_u32 v{vWO+j}, v{T+4}, 4, v{T+3}')
        a(f'v_cmp_gt_u32 vcc, 112, v{T+2}')
        a(f'v_mov_b32 v{T+5}, 0x7f000000')
        a(f'v_cndmask_b32 v{vWO+j}, v{T+5}, v{vWO+j}, vcc')
        a(f'v_cmp_gt_u32 vcc, 960, v{T}')
        a(f'v_cndmask_b32 v{vWO+j}, v{T+5}, v{vWO+j}, vcc')
    a(f'v_lshrrev_b32 v{T}, 3, v2')
    a(f'v_and_b32 v{T+1}, 7, v2')
    a(f'v_xor_b32 v{T+1}, v{T+1}, v{T}')
    a(f'v_mul_u32_u24 v{T}, 1280, v{T}')
    a(f'v_lshl_add_u32 v{vXO}, v{T+1}, 4, v{T}')
    a('s_waitcnt lgkmcnt(0)')
    srd(a, sX, 6, 7, L * D * 2)
    srd(a, sW, 44, 45, D * F * 2)
    srd(a, sB1, 46, 47, F * 2)
    srd(a, sH, 4, 5, SZ_H, WS_H)
    srd(a, sST, 4, 5, SZ_STAT, WS_STAT)
    srd(a, sCS, 4, 5, SZ_CS, WS_CS)
    a(f's_mul_i32 s{s_wbase}, s{s_ct}, 224')
    a(f's_lshl_b32 s{s_xbase}, s{s_rt}, 7')
    a(f's_lshl_b32 s38, s{s_wave}, 5')
    a(f's_add_u32 s{s_xbase}, s{s_xbase}, s38')
    a(f's_mul_i32 s{s_xbase}, s{s_xbase}, 1280')
    a(f's_lshl_b32 s42, s{s_wave}, 10')
    a(f's_lshl_b32 s43, s{s_wave}, 12')
    def dma(stage):
        buf = (stage % G1_NS) * G1_STAGE
        a(f's_add_u32 s38, s{s_wbase}, {stage*64*3456}')
        for j in range(4):
            a(f's_add_u32 m0, s42, {buf + 4096*j}')
            a(f'buffer_load_dwordx4 v{vWO+j}, s[{sW}:{sW+3}], s38 offen lds')
        for j in range(4):
            a(f's_add_u32 s39, s{s_xbase}, {stage*128 + j*8*1280}')
            a(f's_add_u32 m0, s43, {buf + G1_X + 1024*j}')
            a(f'buffer_load_dwordx4 v{vXO}, s[{sX}:{sX+3}], s39 offen lds')
    for s in range(G1_NS): dma(s)
    st_.stamp()
    vA, vB0, vB1 = 16, 17, 18
    vAc, vB0c, vB1c = 19, 20, 21
    a(f'v_lshrrev_b32 v{T}, 4, v2')
    a(f'v_mul_u32_u24 v{vA}, 1920, v{T}')
    a(f'v_bfe_u32 v{T+1}, v2, 2, 2')
    a(f'v_mul_u32_u24 v{T+1}, 224, v{T+1}')
    a(f'v_add_u32 v{vA}, v{vA}, v{T+1}')
    a(f'v_and_b32 v{T+1}, 3, v2')
    a(f'v_lshl_add_u32 v{vA}, v{T+1}, 3, v{vA}')
    a(f'v_and_b32 v{T+1}, 15, v2')
    a(f's_lshl_b32 s38, s{s_wave}, 5')
    a(f'v_add_u32 v{T+2}, s38, v{T+1}')
    a(f'v_lshlrev_b32 v{T+2}, 7, v{T+2}')
    a(f'v_and_b32 v{T+3}, 7, v{T+1}')
    a(f'v_xor_b32 v{T+4}, v{T}, v{T+3}')
    a(f'v_lshl_add_u32 v{vB0}, v{T+4}, 4, v{T+2}')
    a(f'v_xor_b32 v{T+4}, 4, v{T+4}')
    a(f'v_lshl_add_u32 v{vB1}, v{T+4}, 4, v{T+2}')
    a(f'v_add_u32 v{vB0}, {G1_X}, v{vB0}')
    a(f'v_add_u32 v{vB1}, {G1_X}, v{vB1}')
    ACC = 24
    FR = 80
    for i in range(56): a(f'v_mov_b32 v{ACC+i}, 0')
    def set_stage(stage):
        buf = (stage % G1_NS) * G1_STAGE
        a(f'v_add_u32 v{vAc}, {buf}, v{vA}')
        a(f'v_add_u32 v{vB0c}, {buf}, v{vB0}')
        a(f'v_add_u32 v{vB1c}, {buf}, v{vB1}')
    def reads(j):
        st = j & 1; fb = FR + 36 * (j & 1)
        out = []
        vb = vB0c if st == 0 else vB1c
        for n in range(2):
            out.append(f'ds_read_b128 v[{fb+28+4*n}:{fb+31+4*n}], v{vb} offset:{2048*n}')
        for aa in range(7):
            for t in range(2):
                out.append(f'ds_read_b64_tr_b16 v[{fb+4*aa+2*t}:{fb+4*aa+2*t+1}], v{vAc} offset:{7680*st + 896*t + 32*aa}')
        return out
    vST = 152
    vCS = 156
    vBB = 184
    def side_loads():
        a(f'v_and_b32 v{T}, 15, v2')
        a(f'v_lshlrev_b32 v{T}, 3, v{T}')
        a(f's_lshl_b32 s38, s{s_rt}, 7')
        a(f's_lshl_b32 s39, s{s_wave}, 5')
        a('s_add_u32 s38, s38, s39')
        a('s_lshl_b32 s38, s38, 3')
        for n in range(2):
            a(f'buffer_load_dwordx2 v[{vST+2*n}:{vST+2*n+1}], v{T}, s[{sST}:{sST+3}], s38 offen offset:{128*n}')
        a(f'v_lshrrev_b32 v{T+1}, 4, v2')
        a(f'v_lshlrev_b32 v{T+2}, 4, v{T+1}')
        a(f'v_lshlrev_b32 v{T+3}, 3, v{T+1}')
        a(f's_mul_i32 s38, s{s_ct}, 448')
        a(f's_mul_i32 s39, s{s_ct}, 224')
        for aa in range(7):
            a(f'buffer_load_dwordx4 v[{vCS+4*aa}:{vCS+4*aa+3}], v{T+2}, s[{sCS}:{sCS+3}], s38 offen offset:{64*aa}')
            a(f'buffer_load_dwordx2 v[{vBB+2*aa}:{vBB+2*aa+1}], v{T+3}, s[{sB1}:{sB1+3}], s39 offen offset:{32*aa}')
    NSIDE = 16
    a(f's_waitcnt vmcnt({8*(G1_NS-1)})')
    a('s_barrier')
    st_.stamp()
    set_stage(0)
    for x in reads(0): a(x)
    for j in range(20):
        k = j >> 1
        fb = FR + 36 * (j & 1)
        a('s_waitcnt lgkmcnt(0)')
        if j & 1:
            if k + 1 < 10:
                issued = min(10, k + G1_NS)
                younger = issued - (k + 2)
                extra = NSIDE if (side_done) else 0
                a(f's_waitcnt vmcnt({min(63, 8*younger + extra)})')
                a('s_barrier')
                if k + G1_NS < 10: dma(k + G1_NS)
                set_stage(k + 1)
        side_done = False if j == 0 else side_done
        nxt = reads(j + 1) if j + 1 < 20 else []
        kk = 0
        i = 0
        for aa in range(7):
            for n in range(2):
                c = ACC + (aa * 2 + n) * 4
                a(f'v_mfma_f32_16x16x32_bf16 v[{c}:{c+3}], v[{fb+4*aa}:{fb+4*aa+3}], v[{fb+28+4*n}:{fb+31+4*n}], v[{c}:{c+3}]')
                if kk < len(nxt): a(nxt[kk]); kk += 1
                if kk < len(nxt) and i % 7 == 6: a(nxt[kk]); kk += 1
                i += 1
        while kk < len(nxt): a(nxt[kk]); kk += 1
        if j == 13:
            side_loads(); side_done = True
    st_.stamp()
    a('s_waitcnt vmcnt(0)')
    kk_ = 2.0 * 0.7978845608028654 * 1.4426950408889634
    E = FR
    C0, C1, ONE = FR + 56, FR + 58, FR + 60
    for i in range(2):
        a(f'v_mov_b32 v{C0+i}, {f2u(-kk_)}')
        a(f'v_mov_b32 v{C1+i}, {f2u(-kk_ * 0.044715)}')
        a(f'v_mov_b32 v{ONE+i}, 1.0')
    OUT = FR + 24
    for n in range(2):
        m, r = vST + 2 * n, vST + 2 * n + 1
        a(f'v_mov_b32 v{E+16+4*n}, v{m}'); a(f'v_mov_b32 v{E+17+4*n}, v{m}')
        a(f'v_mov_b32 v{E+18+4*n}, v{r}'); a(f'v_mov_b32 v{E+19+4*n}, v{r}')
    for aa in range(7):
        b = vBB + 2 * aa
        a(f'v_lshlrev_b32 v{E+8}, 16, v{b}')
        a(f'v_and_b32 v{E+9}, 0xffff0000, v{b}')
        a(f'v_lshlrev_b32 v{E+10}, 16, v{b+1}')
        a(f'v_and_b32 v{E+11}, 0xffff0000, v{b+1}')
        for n in range(2):
            mm = E + 16 + 4 * n; rr = mm + 2
            for h in range(2):
                c = ACC + (aa * 2 + n) * 4 + 2 * h
                cs = vCS + 4 * aa + 2 * h
                bb = E + 8 + 2 * h
                u = E + 2 * h * 2
                z = E + 4 * h; p = z + 2
                a(f'v_pk_fma_f32 v[{c}:{c+1}], v[{mm}:{mm+1}], v[{cs}:{cs+1}], v[{c}:{c+1}] neg_lo:[1,0,0] neg_hi:[1,0,0]')
                a(f'v_pk_fma_f32 v[{c}:{c+1}], v[{c}:{c+1}], v[{rr}:{rr+1}], v[{bb}:{bb+1}]')
            for h in range(2):
                c = ACC + (aa * 2 + n) * 4 + 2 * h
                z = E + 4 * h; p = z + 2
                a(f'v_pk_mul_f32 v[{p}:{p+1}], v[{c}:{c+1}], v[{c}:{c+1}]')
            for h in range(2):
                c = ACC + (aa * 2 + n) * 4 + 2 * h
                z = E + 4 * h; p = z + 2
                a(f'v_pk_fma_f32 v[{p}:{p+1}], v[{p}:{p+1}], v[{C1}:{C1+1}], v[{C0}:{C0+1}]')
            for h in range(2):
                c = ACC + (aa * 2 + n) * 4 + 2 * h
                z = E + 4 * h; p = z + 2
                a(f'v_pk_mul_f32 v[{z}:{z+1}], v[{p}:{p+1}], v[{c}:{c+1}]')
            for h in range(2):
                z = E + 4 * h
                a(f'v_exp_f32 v{z}, v{z}'); a(f'v_exp_f32 v{z+1}, v{z+1}')
            for h in range(2):
                z = E + 4 * h
                a(f'v_pk_add_f32 v[{z}:{z+1}], v[{z}:{z+1}], v[{ONE}:{ONE+1}]')
            for h in range(2):
                z = E + 4 * h
                a(f'v_rcp_f32 v{z}, v{z}'); a(f'v_rcp_f32 v{z+1}, v{z+1}')
            for h in range(2):
                c = ACC + (aa * 2 + n) * 4 + 2 * h
                z = E + 4 * h
                a(f'v_pk_mul_f32 v[{c}:{c+1}], v[{c}:{c+1}], v[{z}:{z+1}]')
            for h in range(2):
                c = ACC + (aa * 2 + n) * 4 + 2 * h
                a(f'v_cvt_pk_bf16_f32 v{OUT + (aa*2+n)*2 + h}, v{c}, v{c+1}')
    st_.stamp()
    vL16 = E; vL16h = E + 1
    a(f'v_lshlrev_b32 v{vL16}, 4, v2')
    a(f's_lshl_b32 s38, s{s_rt}, 1')
    a(f's_lshr_b32 s39, s{s_wave}, 1')
    a('s_add_u32 s38, s38, s39')
    a(f's_mul_i32 s38, s38, {54*4096}')
    a(f's_and_b32 s39, s{s_wave}, 1')
    a('s_lshl_b32 s39, s39, 11')
    a('s_add_u32 s38, s38, s39')
    a(f's_mul_i32 s39, s{s_ct}, 7')
    a('s_lshr_b32 s52, s39, 1')
    a('s_lshl_b32 s53, s52, 12')
    a('s_add_u32 s38, s38, s53')
    a(f's_bitcmp1_b32 s{s_ct}, 0')
    a('s_cbranch_scc1 L_g1_odd')
    PK = E + 4
    def store_pair(a0, a1, srel, n):
        t = PK + 4 * n
        o0 = OUT + (a0 * 2 + n) * 2; o1 = OUT + (a1 * 2 + n) * 2
        a(f'v_mov_b32 v{t}, v{o0}'); a(f'v_mov_b32 v{t+1}, v{o0+1}')
        a(f'v_mov_b32 v{t+2}, v{o1}'); a(f'v_mov_b32 v{t+3}, v{o1+1}')
        a(f's_add_u32 s53, s38, {srel*4096 + n*1024}')
        a(f'buffer_store_dwordx4 v[{t}:{t+3}], v{vL16}, s[{sH}:{sH+3}], s53 offen')
    def store_half(a0, half, srel, n):
        o0 = OUT + (a0 * 2 + n) * 2
        a(f's_add_u32 s53, s38, {srel*4096 + n*1024}')
        a(f'buffer_store_dwordx2 v[{o0}:{o0+1}], v{vL16}, s[{sH}:{sH+3}], s53 offen offset:{8*half}')
    for i in range(3):
        for n in range(2): store_pair(2 * i, 2 * i + 1, i, n)
    for n in range(2): store_half(6, 0, 3, n)
    a('s_branch L_g1_stored')
    a('L_g1_odd:')
    for n in range(2): store_half(0, 1, 0, n)
    for n in range(2): store_pair(1, 2, 1, n)
    a(f's_cmp_eq_u32 s{s_ct}, 15')
    a('s_cbranch_scc1 L_g1_stored')
    for i in range(1, 3):
        for n in range(2): store_pair(2 * i + 1, 2 * i + 2, i + 1, n)
    a('L_g1_stored:')
    st_.stamp()
    a('s_waitcnt vmcnt(0)')
    st_.stamp(); st_.stamp(True)
    st_.dump(4, 5, s_wave)
    a('L_g1_end:')
    a('s_endpgm')
    return a.lines, 200

if __name__ == '__main__':
    import sys
    lines, vg = gen_g1(stamps=len(sys.argv) > 1)
    txt = assemble_file([('g1_kernel', lines, vg, 102, None)], [('g1_kernel', 256, 256, G1_LDS)])
    open('g1.s', 'w').write(txt)
    print(vg, G1_LDS)
```

```python
from common import *

G2_P = 336
G2_RED = 0
G2_RED_SZ = 4 * 3 * 16 * G2_P
G2_S = G2_RED_SZ
G2_S_SZ = 10 * 1040
G2_PB = G2_S + G2_S_SZ + 48
G2_PPITCH = 176
G2_LDS = G2_PB + 64 * G2_PPITCH

def gen_g2(name='g2_kernel', nwg=256, stamps=False):
    a = Asm()
    st_ = Stamps(a, stamps)
    sH, sW, sX, sS, sO, sB = 8, 12, 16, 20, 24, 28
    s_wave, s_rt, s_ct, s_t0, s_t1 = 32, 33, 34, 35, 36
    s_hoff, s_woff, s_last_h, s_last_w = 40, 41, 42, 43
    a(f's_cmp_ge_u32 s2, {nwg}')
    a('s_cbranch_scc1 L_g2_end')
    st_.stamp(True); st_.stamp()
    a(f's_load_dwordx2 s[4:5], s[0:1], {KA["ws"]}')
    a(f's_load_dwordx2 s[6:7], s[0:1], {KA["x"]}')
    a(f's_load_dwordx2 s[44:45], s[0:1], {KA["out"]}')
    a(f's_load_dwordx2 s[46:47], s[0:1], {KA["b2"]}')
    a('v_lshrrev_b32 v1, 6, v0')
    a('v_and_b32 v2, 63, v0')
    a(f'v_readfirstlane_b32 s{s_wave}, v1')
    a(f's_and_b32 s{s_t0}, s2, 7')
    a(f's_lshr_b32 s{s_t1}, s2, 3')
    a(f's_lshr_b32 s{s_rt}, s{s_t0}, 1')
    a(f's_lshl_b32 s{s_rt}, s{s_rt}, 3')
    a(f's_and_b32 s37, s{s_t1}, 7')
    a(f's_add_u32 s{s_rt}, s{s_rt}, s37')
    a(f's_and_b32 s{s_ct}, s{s_t0}, 1')
    a(f's_lshl_b32 s{s_ct}, s{s_ct}, 2')
    a(f's_lshr_b32 s37, s{s_t1}, 3')
    a(f's_add_u32 s{s_ct}, s{s_ct}, s37')
    a('s_waitcnt lgkmcnt(0)')
    st_.stamp()
    srd(a, sH, 4, 5, SZ_H, WS_H)
    srd(a, sW, 4, 5, SZ_W2F, WS_W2F)
    srd(a, sS, 4, 5, SZ_ST, WS_ST)
    srd(a, sX, 6, 7, L * D * 2)
    srd(a, sO, 44, 45, L * D * 2)
    srd(a, sB, 46, 47, D * 2)
    a(f's_mul_i32 s{s_t0}, s{s_wave}, 14')
    a(f's_cmp_eq_u32 s{s_wave}, 3')
    a(f's_cselect_b32 s{s_t1}, 1, 0')
    a(f's_sub_u32 s{s_t0}, s{s_t0}, s{s_t1}')
    a(f's_mul_i32 s{s_hoff}, s{s_rt}, 54')
    a(f's_add_u32 s{s_hoff}, s{s_hoff}, s{s_t0}')
    a(f's_lshl_b32 s{s_hoff}, s{s_hoff}, 12')
    a(f's_mul_i32 s{s_woff}, s{s_ct}, 54')
    a(f's_add_u32 s{s_woff}, s{s_woff}, s{s_t0}')
    a(f's_mul_i32 s{s_woff}, s{s_woff}, 5120')
    a(f's_cmp_lt_u32 s{s_wave}, 2')
    a(f's_add_u32 s{s_last_h}, s{s_hoff}, {13*4096}')
    a(f's_add_u32 s{s_last_w}, s{s_woff}, {13*5120}')
    a(f's_cmp_lt_u32 s{s_wave}, 2')
    a(f's_cselect_b32 s{s_last_h}, s{s_last_h}, 0x7f000000')
    a(f's_cselect_b32 s{s_last_w}, s{s_last_w}, 0x7f000000')
    vL16, vL16b = 3, 4
    ACC = 8
    SET = 88
    a(f'v_lshlrev_b32 v{vL16}, 4, v2')
    a(f'v_add_u32 v{vL16b}, 4096, v{vL16}')
    def loads(step):
        base = SET + (step % 3) * 36
        if step == 13:
            ho, wo = f's{s_last_h}', f's{s_last_w}'
        else:
            a(f's_add_u32 s38, s{s_hoff}, {step*4096}')
            a(f's_add_u32 s39, s{s_woff}, {step*5120}')
            ho, wo = 's38', 's39'
        for i in range(4):
            a(f'buffer_load_dwordx4 v[{base+4*i}:{base+4*i+3}], v{vL16}, s[{sW}:{sW+3}], {wo} offen offset:{1024*i}')
        a(f'buffer_load_dwordx4 v[{base+16}:{base+19}], v{vL16b}, s[{sW}:{sW+3}], {wo} offen')
        for i in range(4):
            a(f'buffer_load_dwordx4 v[{base+20+4*i}:{base+23+4*i}], v{vL16}, s[{sH}:{sH+3}], {ho} offen offset:{1024*i}')
    st_.stamp()
    for st in range(3): loads(st)
    st_.stamp()
    vSo = 5
    a(f'v_lshrrev_b32 v6, 3, v2')
    a(f'v_lshlrev_b32 v6, 12, v6')
    a(f'v_and_b32 v7, 7, v2')
    a(f'v_lshlrev_b32 v7, 4, v7')
    a(f'v_add_u32 v{vSo}, v6, v7')
    a(f's_mul_i32 s48, s{s_ct}, {80*4096}')
    a(f's_lshl_b32 s49, s{s_rt}, 7')
    a(f's_add_u32 s48, s48, s49')
    a(f's_lshl_b32 s49, s{s_wave}, 15')
    a(f's_add_u32 s48, s48, s49')
    a(f's_mul_i32 s50, s{s_wave}, 1040')
    a(f's_add_u32 s50, s50, {G2_S}')
    for gi in range(3):
        if gi == 2:
            a(f's_cmp_ge_u32 s{s_wave}, 2')
            a('s_cbranch_scc1 L_g2_s_done')
        a(f's_add_u32 m0, s50, {gi*4*1040}')
        a(f's_add_u32 s49, s48, {gi*4*8*4096}')
        a(f'buffer_load_dwordx4 v{vSo}, s[{sS}:{sS+3}], s49 offen lds')
    a('L_g2_s_done:')
    for i in range(80): a(f'v_mov_b32 v{ACC+i}, 0')
    st_.stamp()
    NSIDE = 2
    for st in range(14):
        base = SET + (st % 3) * 36
        if st == 0: n = 18 + NSIDE
        elif st == 1: n = 18
        else: n = 18
        if st == 1: n = 9 + NSIDE + 9
        if st == 2: n = NSIDE + 18
        if st >= 12: n = 9 * (13 - st)
        if st == 11: n = 18
        a(f's_waitcnt vmcnt({min(n,63)})')
        if st in (0, 1): st_.stamp()
        for aa in range(5):
            for nn in range(4):
                acc = ACC + (aa * 4 + nn) * 4
                a(f'v_mfma_f32_16x16x32_bf16 v[{acc}:{acc+3}], v[{base+4*aa}:{base+4*aa+3}], v[{base+20+4*nn}:{base+23+4*nn}], v[{acc}:{acc+3}]')
        if st + 3 < 14: loads(st + 3)
    st_.stamp()
    vXo = SET
    vPo = SET + 3
    XD = SET + 8
    a(f's_lshl_b32 s52, s{s_rt}, 6')
    a(f's_lshl_b32 s53, s{s_wave}, 4')
    a(f's_add_u32 s52, s52, s53')
    a(f's_mul_i32 s52, s52, 1280')
    a(f's_mul_i32 s53, s{s_ct}, 160')
    a(f's_add_u32 s52, s52, s53')
    a('s_mov_b32 s54, 0x199a')
    for i in range(3):
        a(f'v_add_u32 v6, {64*i}, v2')
        a(f'v_mul_u32_u24 v7, s54, v6')
        a(f'v_lshrrev_b32 v7, 16, v7')
        a(f'v_mul_u32_u24 v{vPo+i}, 10, v7')
        a(f'v_sub_u32 v6, v6, v{vPo+i}')
        a(f'v_lshlrev_b32 v6, 4, v6')
        a(f'v_mul_u32_u24 v{vXo+i}, 1280, v7')
        a(f'v_add_u32 v{vXo+i}, v{vXo+i}, v6')
        a(f'v_mul_u32_u24 v{vPo+i}, {G2_PPITCH}, v7')
        a(f'v_add_u32 v{vPo+i}, v{vPo+i}, v6')
    a(f'v_cmp_gt_u32 vcc, 32, v2')
    a(f'v_mov_b32 v6, 0x7f000000')
    a(f'v_cndmask_b32 v{vXo+2}, v6, v{vXo+2}, vcc')
    for i in range(3):
        a(f'buffer_load_dwordx4 v[{XD+4*i}:{XD+4*i+3}], v{vXo+i}, s[{sX}:{sX+3}], s52 offen')
    B2 = SET + 24
    a(f'v_lshrrev_b32 v6, 4, v2')
    a(f'v_lshlrev_b32 v6, 3, v6')
    a(f's_mul_i32 s53, s{s_ct}, 160')
    for aa in range(5):
        a(f'buffer_load_dwordx2 v[{B2+2*aa}:{B2+2*aa+1}], v6, s[{sB}:{sB+3}], s53 offen offset:{32*aa}')
    vRa = 5
    a(f'v_and_b32 v6, 15, v2')
    a(f'v_mul_u32_u24 v6, {G2_P}, v6')
    a(f'v_lshrrev_b32 v7, 4, v2')
    a(f'v_lshlrev_b32 v7, 4, v7')
    a(f'v_add_u32 v{vRa}, v6, v7')
    for w in range(4):
        if w < 3:
            a(f's_cmp_lg_u32 s{s_wave}, {w}')
            a(f's_cbranch_scc1 L_g2_w{w+1}')
        for slot in range(3):
            n = (w + 1 + slot) & 3
            for aa in range(5):
                acc = ACC + (aa * 4 + n) * 4
                off = G2_RED + (w * 3 + slot) * 16 * G2_P + aa * 64
                assert off < 65536
                a(f'ds_write_b128 v{vRa}, v[{acc}:{acc+3}] offset:{off}')
        for aa in range(5):
            acc = ACC + (aa * 4 + w) * 4
            if w != 0:
                for r in range(4): a(f'v_mov_b32 v{ACC + aa*16 + r}, v{acc + r}')
        if w < 3: a('s_branch L_g2_wdone')
        if w < 3: a(f'L_g2_w{w+1}:')
    a('L_g2_wdone:')
    a('s_waitcnt lgkmcnt(0)')
    a('s_waitcnt vmcnt(8)')
    a('s_barrier')
    st_.stamp()
    T = SET + 40
    for slot in range(3):
        a(f's_sub_u32 s55, s{s_wave}, {1+slot}')
        a(f's_and_b32 s55, s55, 3')
        a(f's_mul_i32 s55, s55, 3')
        a(f's_add_u32 s55, s55, {slot}')
        a(f's_mul_i32 s55, s55, {16*G2_P}')
        a(f'v_add_u32 v{6+0}, s55, v{vRa}')
        for aa in range(5):
            t = T + (slot * 5 + aa) * 4
            a(f'ds_read_b128 v[{t}:{t+3}], v6 offset:{G2_RED + aa*64}')
    SV = T + 60
    a(f'v_lshrrev_b32 v6, 5, v2')
    a(f'v_mul_u32_u24 v6, 1040, v6')
    a(f'v_lshrrev_b32 v7, 4, v2')
    a(f'v_and_b32 v7, 1, v7')
    a(f'v_lshlrev_b32 v7, 9, v7')
    a(f'v_add_u32 v6, v6, v7')
    a(f'v_bfe_u32 v7, v2, 2, 2')
    a(f'v_lshlrev_b32 v7, 7, v7')
    a(f'v_add_u32 v6, v6, v7')
    a(f'v_and_b32 v7, 3, v2')
    a(f'v_lshlrev_b32 v7, 3, v7')
    a(f'v_add_u32 v6, v6, v7')
    a(f's_lshl_b32 s55, s{s_wave}, 5')
    a(f's_add_u32 s55, s55, {G2_S}')
    a(f'v_add_u32 v6, s55, v6')
    for aa in range(5):
        a(f'ds_read_b64_tr_b16 v[{SV+2*aa}:{SV+2*aa+1}], v6 offset:{aa*2*1040}')
    a('s_waitcnt lgkmcnt(5)')
    for aa in range(5):
        own = ACC + aa * 16
        for slot in range(3):
            t = T + (slot * 5 + aa) * 4
            a(f'v_pk_add_f32 v[{own}:{own+1}], v[{own}:{own+1}], v[{t}:{t+1}]')
            a(f'v_pk_add_f32 v[{own+2}:{own+3}], v[{own+2}:{own+3}], v[{t+2}:{t+3}]')
    a('s_waitcnt vmcnt(0) lgkmcnt(0)')
    a('s_mov_b32 s56, 0xbfb8aa3b')
    for aa in range(5):
        own = ACC + aa * 16
        b = B2 + 2 * aa
        t = T
        a(f'v_lshlrev_b32 v{t}, 16, v{b}')
        a(f'v_and_b32 v{t+1}, 0xffff0000, v{b}')
        a(f'v_lshlrev_b32 v{t+2}, 16, v{b+1}')
        a(f'v_and_b32 v{t+3}, 0xffff0000, v{b+1}')
        a(f'v_pk_add_f32 v[{own}:{own+1}], v[{own}:{own+1}], v[{t}:{t+1}]')
        a(f'v_pk_add_f32 v[{own+2}:{own+3}], v[{own+2}:{own+3}], v[{t+2}:{t+3}]')
        a(f'v_cvt_pk_bf16_f32 v{t+4}, v{own}, v{own+1}')
        a(f'v_cvt_pk_bf16_f32 v{t+5}, v{own+2}, v{own+3}')
        a(f'v_lshlrev_b32 v{own}, 16, v{t+4}')
        a(f'v_and_b32 v{own+1}, 0xffff0000, v{t+4}')
        a(f'v_lshlrev_b32 v{own+2}, 16, v{t+5}')
        a(f'v_and_b32 v{own+3}, 0xffff0000, v{t+5}')
        for r in range(4): a(f'v_mul_f32 v{t+8+r}, s56, v{own+r}')
        for r in range(4): a(f'v_exp_f32 v{t+8+r}, v{t+8+r}')
        for r in range(4): a(f'v_add_f32 v{t+8+r}, 1.0, v{t+8+r}')
        for r in range(4): a(f'v_rcp_f32 v{t+8+r}, v{t+8+r}')
        for r in range(4): a(f'v_mul_f32 v{own+r}, v{own+r}, v{t+8+r}')
        a(f'v_cvt_pk_bf16_f32 v{t+4}, v{own}, v{own+1}')
        a(f'v_cvt_pk_bf16_f32 v{t+5}, v{own+2}, v{own+3}')
        a(f'v_lshlrev_b32 v{own}, 16, v{t+4}')
        a(f'v_and_b32 v{own+1}, 0xffff0000, v{t+4}')
        a(f'v_lshlrev_b32 v{own+2}, 16, v{t+5}')
        a(f'v_and_b32 v{own+3}, 0xffff0000, v{t+5}')
        s = SV + 2 * aa
        a(f'v_lshlrev_b32 v{t}, 16, v{s}')
        a(f'v_and_b32 v{t+1}, 0xffff0000, v{s}')
        a(f'v_lshlrev_b32 v{t+2}, 16, v{s+1}')
        a(f'v_and_b32 v{t+3}, 0xffff0000, v{s+1}')
        a(f'v_pk_mul_f32 v[{own}:{own+1}], v[{own}:{own+1}], v[{t}:{t+1}]')
        a(f'v_pk_mul_f32 v[{own+2}:{own+3}], v[{own+2}:{own+3}], v[{t+2}:{t+3}]')
        a(f'v_cvt_pk_bf16_f32 v{own}, v{own}, v{own+1}')
        a(f'v_cvt_pk_bf16_f32 v{own+1}, v{own+2}, v{own+3}')
    a(f'v_and_b32 v6, 15, v2')
    a(f'v_mul_u32_u24 v6, {G2_PPITCH}, v6')
    a(f'v_lshrrev_b32 v7, 4, v2')
    a(f'v_lshlrev_b32 v7, 3, v7')
    a(f'v_add_u32 v6, v6, v7')
    a(f's_mul_i32 s55, s{s_wave}, {16*G2_PPITCH}')
    a(f's_add_u32 s55, s55, {G2_PB}')
    a(f'v_add_u32 v6, s55, v6')
    for aa in range(5):
        own = ACC + aa * 16
        a(f'ds_write_b64 v6, v[{own}:{own+1}] offset:{aa*32}')
    a('s_waitcnt lgkmcnt(0)')
    PD = T
    for i in range(3):
        a(f'v_add_u32 v{vPo+i}, s55, v{vPo+i}')
    a(f'v_cndmask_b32 v{vPo+2}, v{vPo+1}, v{vPo+2}, vcc')
    for i in range(3):
        a(f'ds_read_b128 v[{PD+4*i}:{PD+4*i+3}], v{vPo+i}')
    a('s_waitcnt lgkmcnt(0)')
    for i in range(3):
        for r in range(4):
            p = PD + 4 * i + r; x = XD + 4 * i + r; t = T + 16
            a(f'v_lshlrev_b32 v{t}, 16, v{p}')
            a(f'v_and_b32 v{t+1}, 0xffff0000, v{p}')
            a(f'v_lshlrev_b32 v{t+2}, 16, v{x}')
            a(f'v_and_b32 v{t+3}, 0xffff0000, v{x}')
            a(f'v_pk_add_f32 v[{t}:{t+1}], v[{t}:{t+1}], v[{t+2}:{t+3}]')
            a(f'v_cvt_pk_bf16_f32 v{p}, v{t}, v{t+1}')
        a(f'buffer_store_dwordx4 v[{PD+4*i}:{PD+4*i+3}], v{vXo+i}, s[{sO}:{sO+3}], s52 offen')
    st_.stamp()
    a('s_waitcnt vmcnt(0)')
    st_.stamp(); st_.stamp(True)
    st_.dump(4, 5, s_wave)
    a('L_g2_end:')
    a('s_endpgm')
    return a.lines, 200

if __name__ == '__main__':
    import sys
    lines, vg = gen_g2(stamps=len(sys.argv) > 1)
    txt = assemble_file([('g2_kernel', lines, vg, 102, None)], [('g2_kernel', 256, 256, G2_LDS)])
    open('g2.s', 'w').write(txt)
    print(G2_LDS)
```

```python
from common import *

KG_PITCH = 160
KG_ROWS = 0
KG_COLS = 41 * KG_PITCH
KG_KC = 2 * 41 * KG_PITCH
KG_WAVE = KG_KC + 1600
LOG2E = 0x3fb8aa3b
INV2PI = 0x3e22f983

def entry_index(a, dst, E, t):
    a(f'v_mov_b32 v{dst}, v{E}')
    for thr, base, sh in ((16, 16, 1), (32, 24, 2), (64, 32, 3)):
        a(f'v_subrev_u32 v{t}, {thr}, v{E}')
        a(f'v_lshrrev_b32 v{t}, {sh}, v{t}')
        a(f'v_add_u32 v{t}, {base}, v{t}')
        a(f'v_cmp_le_u32 vcc, {thr}, v{E}')
        a(f'v_cndmask_b32 v{dst}, v{dst}, v{t}, vcc')

def gen_kgen_body(a, P, s_ch, s_lds, sLA, sAI, sCR, sCI, sDT, sKR, st_=None):
    v = P['v0']; s0 = P['s0']; s1 = s0 + 1; s2 = s0 + 2
    PAR = v
    vDT = v + 16
    vM2 = v + 17
    vWA = v + 18
    vSC = v + 19
    vSG = v + 20
    vH = v + 21
    AA = v + 22
    AB = v + 26
    G = v + 30
    Pp = v + 32
    T = v + 34
    T2 = v + 36
    ACC = v + 44
    FA = v + 60
    FB = v + 92
    top = v + 124
    assert v % 4 == 0
    a(f'v_and_b32 v{vM2}, 31, v2')
    a(f'v_lshlrev_b32 v{vM2}, 1, v{vM2}')
    a(f's_lshl_b32 s{s0}, s{s_ch}, 8')
    for p in range(4):
        for k, sr in enumerate((sLA, sAI, sCR, sCI)):
            a(f'buffer_load_ushort v{PAR+4*p+k}, v{vM2}, s[{sr}:{sr+3}], s{s0} offen offset:{64*p}')
    a(f's_lshl_b32 s{s1}, s{s_ch}, 1')
    a(f'v_mov_b32 v{T2}, 0')
    a(f'buffer_load_ushort v{vDT}, v{T2}, s[{sDT}:{sDT+3}], s{s1} offen')
    a(f'v_lshrrev_b32 v{vH}, 5, v2')
    a(f'v_cmp_eq_u32 vcc, 0, v{vH}')
    a(f'v_mov_b32 v{T2}, 1.0')
    a(f'v_mov_b32 v{T2+1}, 0x41800000')
    a(f'v_cndmask_b32 v{vSC}, v{T2}, v{T2+1}, vcc')
    a(f'v_mov_b32 v{T2+1}, -1.0')
    a(f'v_cndmask_b32 v{vSG}, v{T2}, v{T2+1}, vcc')
    a(f'v_mul_u32_u24 v{vWA}, {KG_COLS}, v{vH}')
    a(f'v_lshl_add_u32 v{vWA}, v{vM2}, 1, v{vWA}')
    a(f'v_add_u32 v{vWA}, s{s_lds}, v{vWA}')
    vI, vQ, vE, vK = T2, T2 + 1, T2 + 2, T2 + 3
    a(f'v_and_b32 v{vI}, 15, v2')
    a(f'v_lshrrev_b32 v{vQ}, 4, v2')
    a(f'v_lshlrev_b32 v{vQ}, 4, v{vQ}')
    a(f'v_add_u32 v{vQ}, s{s_lds}, v{vQ}')
    for s in range(4):
        if s == 0: a(f'v_mov_b32 v{vK}, v{vI}')
        elif s < 3:
            a(f'v_and_b32 v{vK}, 7, v{vI}'); a(f'v_add_u32 v{vK}, {16 + 8*(s-1)}, v{vK}')
        else:
            a(f'v_min_u32 v{vK}, 8, v{vI}'); a(f'v_add_u32 v{vK}, 32, v{vK}')
        a(f'v_mul_u32_u24 v{vK}, {KG_PITCH}, v{vK}')
        a(f'v_add_u32 v{AA+s}, v{vK}, v{vQ}')
        a(f'v_lshlrev_b32 v{vE}, {s}, v{vI}')
        entry_index(a, vK, vE, T2 + 4)
        a(f'v_mul_u32_u24 v{vK}, {KG_PITCH}, v{vK}')
        a(f'v_add_u32 v{vK}, {KG_COLS}, v{vK}')
        a(f'v_add_u32 v{AB+s}, v{vK}, v{vQ}')
    for i in range(16): a(f'v_mov_b32 v{ACC+i}, 0')
    a(f'v_cmp_eq_u32 vcc, 0, v{vH}')
    a('s_waitcnt vmcnt(0)')
    if st_: st_.stamp()
    a(f's_mov_b32 s{s1}, {LOG2E}')
    a(f's_mov_b32 s{s2}, {INV2PI}')
    a(f'v_lshlrev_b32 v{vDT}, 16, v{vDT}')
    a(f'v_mul_f32 v{vDT}, s{s1}, v{vDT}')
    a(f'v_exp_f32 v{vDT}, v{vDT}')
    a(f'v_cvt_pk_bf16_f32 v{vDT}, v{vDT}, v{vDT}')
    a(f'v_and_b32 v{vDT}, 0xffff0000, v{vDT}')
    for p in range(4):
        la, ai, cr, ci = (PAR + 4 * p + k for k in range(4))
        for r in (la, ai, cr, ci): a(f'v_lshlrev_b32 v{r}, 16, v{r}')
        a(f'v_mul_f32 v{la}, s{s1}, v{la}')
        a(f'v_exp_f32 v{la}, v{la}')
        a(f'v_cvt_pk_bf16_f32 v{la}, v{la}, v{la}')
        a(f'v_and_b32 v{la}, 0xffff0000, v{la}')
        a(f'v_mul_f32 v{la}, v{la}, v{vDT}')
        a(f'v_mul_f32 v{ai}, v{ai}, v{vDT}')
        a(f'v_mul_f32 v{la}, v{la}, v{vSC}')
        a(f'v_mul_f32 v{ai}, v{ai}, v{vSC}')
        a(f'v_mul_f32 v{la}, s{s1}, v{la}')
        a(f'v_exp_f32 v{la}, -v{la}')
        a(f'v_mul_f32 v{ai}, s{s2}, v{ai}')
        a(f'v_fract_f32 v{ai}, v{ai}')
        a(f'v_cos_f32 v{G}, v{ai}')
        a(f'v_sin_f32 v{G+1}, v{ai}')
        a(f'v_mul_f32 v{G}, v{G}, v{la}')
        a(f'v_mul_f32 v{G+1}, v{G+1}, v{la}')
        a(f'v_mul_f32 v{G+1}, v{G+1}, v{vSG}')
        a(f'v_mul_f32 v{cr}, v{cr}, v{vDT}')
        a(f'v_mul_f32 v{ci}, v{ci}, v{vDT}')
        a(f'v_add_f32 v{cr}, v{cr}, v{cr}')
        a(f'v_mul_f32 v{ci}, -2.0, v{ci}')
        a(f'v_cndmask_b32 v{Pp}, 1.0, v{cr}, vcc')
        a(f'v_cndmask_b32 v{Pp+1}, 0, v{ci}, vcc')
        for k in range(41):
            a(f'v_cvt_pk_bf16_f32 v{T2}, v{Pp}, v{Pp+1}')
            if k in (16, 24, 32):
                a(f'v_pk_mul_f32 v[{T}:{T+1}], v[{G}:{G+1}], v[{G}:{G+1}] op_sel:[0,0] op_sel_hi:[0,1]')
                a(f'v_pk_fma_f32 v[{G}:{G+1}], v[{G}:{G+1}], v[{G}:{G+1}], v[{T}:{T+1}] op_sel:[1,1,0] op_sel_hi:[1,0,1] neg_lo:[0,1,0]')
            if k < 40:
                a(f'v_pk_mul_f32 v[{T}:{T+1}], v[{Pp}:{Pp+1}], v[{G}:{G+1}] op_sel:[0,0] op_sel_hi:[0,1]')
            a(f'ds_write_b32 v{vWA}, v{T2} offset:{k*KG_PITCH}')
            if k < 40:
                a(f'v_pk_fma_f32 v[{Pp}:{Pp+1}], v[{Pp}:{Pp+1}], v[{G}:{G+1}], v[{T}:{T+1}] op_sel:[1,1,0] op_sel_hi:[1,0,1] neg_lo:[0,1,0]')
        a('s_waitcnt lgkmcnt(0)')
        for s in range(4):
            for st in range(2):
                fa = FA + (s * 2 + st) * 4; fb = FB + (s * 2 + st) * 4
                a(f'ds_read_b128 v[{fa}:{fa+3}], v{AA+s} offset:{64*st}')
                a(f'ds_read_b128 v[{fb}:{fb+3}], v{AB+s} offset:{64*st}')
        for s in range(4):
            for st in range(2):
                fa = FA + (s * 2 + st) * 4; fb = FB + (s * 2 + st) * 4
                a(f's_waitcnt lgkmcnt({14 - 2*(s*2+st)})')
                a(f'v_mfma_f32_16x16x32_bf16 v[{ACC+4*s}:{ACC+4*s+3}], v[{fa}:{fa+3}], v[{fb}:{fb+3}], v[{ACC+4*s}:{ACC+4*s+3}]')
    if st_: st_.stamp()
    vI, vQ = T2, T2 + 1
    a(f'v_and_b32 v{vI}, 15, v2')
    a(f'v_lshrrev_b32 v{vQ}, 4, v2')
    a(f'v_lshlrev_b32 v{vQ}, 7, v{vQ}')
    a(f'v_lshl_add_u32 v{vQ}, v{vI}, 1, v{vQ}')
    a(f's_add_u32 s{s1}, s{s_lds}, {KG_KC}')
    a(f'v_add_u32 v{vQ}, s{s1}, v{vQ}')
    for s, base in enumerate((0, 256, 384, 512)):
        c = ACC + 4 * s
        a(f'v_cvt_pk_bf16_f32 v{T2+2}, v{c}, v{c+1}')
        a(f'v_cvt_pk_bf16_f32 v{T2+3}, v{c+2}, v{c+3}')
        a(f'ds_write_b16 v{vQ}, v{T2+2} offset:{2*base}')
        a(f'ds_write_b16_d16_hi v{vQ}, v{T2+2} offset:{2*base + 32}')
        a(f'ds_write_b16 v{vQ}, v{T2+3} offset:{2*base + 64}')
        a(f'ds_write_b16_d16_hi v{vQ}, v{T2+3} offset:{2*base + 96}')
    a(f'v_mov_b32 v{T2+2}, 0')
    a(f'v_mov_b32 v{T2+3}, s{s1}')
    a(f'ds_write_b16 v{T2+3}, v{T2+2} offset:{2*768}')
    a(f's_mul_i32 s{s0}, s{s_ch}, {KR_PITCH}')
    a(f'v_lshlrev_b32 v{vM2}, 2, v2')
    for i in range(17):
        lo, hi, f0, f1, b = FA, FA + 1, FA + 2, FA + 3, FA + 4
        out = FB + i
        a(f'v_lshlrev_b32 v{lo}, 1, v2')
        a(f'v_sub_u32 v{lo}, {2047 - 128*i}, v{lo}')
        a(f'v_subrev_u32 v{hi}, 1, v{lo}')
        a(f'v_cvt_f32_i32 v{f0}, v{lo}')
        a(f'v_cvt_f32_i32 v{f1}, v{hi}')
        a(f'v_cvt_pk_bf16_f32 v{b}, v{f0}, v{f1}')
        a(f'v_and_b32 v{f0}, 0xffff, v{b}')
        a(f'v_lshrrev_b32 v{f1}, 16, v{b}')
        for (lag, bits) in ((lo, f0), (hi, f1)):
            a(f'v_subrev_u32 v{bits}, 0x4280, v{bits}')
            a(f'v_cmp_gt_i32 vcc, 128, v{lag}')
            a(f'v_cndmask_b32 v{bits}, v{bits}, v{lag}, vcc')
            a(f'v_cmp_gt_i32 vcc, 0, v{lag}')
            a(f'v_mov_b32 v{b}, 768')
            a(f'v_cndmask_b32 v{bits}, v{bits}, v{b}, vcc')
            a(f'v_lshlrev_b32 v{bits}, 1, v{bits}')
            a(f'v_add_u32 v{bits}, s{s1}, v{bits}')
        a(f'ds_read_u16 v{out}, v{f0}')
        a(f'ds_read_u16 v{FA+8+i}, v{f1}')
    a('s_waitcnt lgkmcnt(0)')
    for i in range(17):
        a(f'v_lshl_or_b32 v{FB+i}, v{FA+8+i}, 16, v{FB+i}')
    for i in range(17):
        if i == 16: a('s_mov_b64 exec, 0xffff')
        a(f'buffer_store_dword v{FB+i}, v{vM2}, s[{sKR}:{sKR+3}], s{s0} offen offset:{256*i}' if i < 16 else
          f's_add_u32 s{s0}, s{s0}, 4096\nbuffer_store_dword v{FB+i}, v{vM2}, s[{sKR}:{sKR+3}], s{s0} offen')
    a('s_mov_b64 exec, -1')
    return top

def gen_kgen(name='kgen_kernel', nwg=160, stamps=False):
    a = Asm()
    st_ = Stamps(a, stamps)
    sLA, sAI, sCR, sCI, sDT, sKR = 8, 12, 16, 20, 24, 28
    s_wave, s_ch, s_lds = 32, 33, 34
    a(f's_cmp_ge_u32 s2, {nwg}')
    a('s_cbranch_scc1 L_kg_end')
    st_.stamp(True); st_.stamp()
    a(f's_load_dwordx4 s[44:47], s[0:1], {KA["logA"]}')
    a(f's_load_dwordx4 s[48:51], s[0:1], {KA["Cre"]}')
    a(f's_load_dwordx2 s[52:53], s[0:1], {KA["logdt"]}')
    a(f's_load_dwordx2 s[4:5], s[0:1], {KA["ws"]}')
    a('v_lshrrev_b32 v1, 6, v0')
    a('v_and_b32 v2, 63, v0')
    a(f'v_readfirstlane_b32 s{s_wave}, v1')
    a(f's_lshl_b32 s{s_ch}, s2, 2')
    a(f's_add_u32 s{s_ch}, s{s_ch}, s{s_wave}')
    a(f's_mul_i32 s{s_lds}, s{s_wave}, {KG_WAVE}')
    a('s_waitcnt lgkmcnt(0)')
    srd(a, sLA, 44, 45, D * N * 2)
    srd(a, sAI, 46, 47, D * N * 2)
    srd(a, sCR, 48, 49, D * N * 2)
    srd(a, sCI, 50, 51, D * N * 2)
    srd(a, sDT, 52, 53, D * 2)
    srd(a, sKR, 4, 5, SZ_KR, WS_KR)
    top = gen_kgen_body(a, dict(v0=4, s0=40), s_ch, s_lds, sLA, sAI, sCR, sCI, sDT, sKR, st_)
    st_.stamp()
    a('s_waitcnt vmcnt(0)')
    st_.stamp(); st_.stamp(True)
    st_.dump(4, 5, s_wave)
    a('L_kg_end:')
    a('s_endpgm')
    return a.lines, top

if __name__ == '__main__':
    import sys
    lines, vg = gen_kgen(stamps=len(sys.argv) > 1)
    txt = assemble_file([('kgen_kernel', lines, vg, 102, None)], [('kgen_kernel', 160, 256, 4 * KG_WAVE)])
    open('kgen.s', 'w').write(txt)
    print(vg, KG_WAVE)
```

```python
from common import *

LN_LDS = (16 * 640 + 2 * 80) * 4 + 64

def dpp_allreduce16(a, r, t):
    for sh in (8, 4, 2, 1):
        a(f'v_add_f32_dpp v{r}, v{r}, v{r} row_ror:{sh} row_mask:0xf bank_mask:0xf')

def gen_ln(name='ln_kernel', nwg=64, stamps=False):
    a = Asm()
    st_ = Stamps(a, stamps)
    sX, sXNT, sSTAT = 8, 12, 16
    s_wave = 32
    a(f's_cmp_ge_u32 s2, {nwg}')
    a('s_cbranch_scc1 L_ln_end')
    st_.stamp(True); st_.stamp()
    a(f's_load_dwordx2 s[4:5], s[0:1], {KA["ws"]}')
    a(f's_load_dwordx2 s[6:7], s[0:1], {KA["x"]}')
    a('v_lshrrev_b32 v1, 6, v0')
    a('v_and_b32 v2, 63, v0')
    a(f'v_readfirstlane_b32 s{s_wave}, v1')
    a('s_waitcnt lgkmcnt(0)')
    srd(a, sX, 6, 7, L * D * 2)
    srd(a, sXNT, 4, 5, SZ_XNT, WS_XNT)
    srd(a, sSTAT, 4, 5, SZ_STAT, WS_STAT)
    vTG, vCL, vOff = 3, 4, 5
    RAW = 8
    XF = 48
    S = 128
    T = 136
    a(f'v_lshrrev_b32 v{vTG}, 4, v2')
    a(f'v_and_b32 v{vCL}, 15, v2')
    a(f's_lshl_b32 s33, s2, 5')
    a(f's_lshl_b32 s34, s{s_wave}, 3')
    a(f's_add_u32 s33, s33, s34')
    a(f's_mul_i32 s34, s33, 1280')
    a(f'v_mul_u32_u24 v{vOff}, 2560, v{vTG}')
    a(f'v_lshl_add_u32 v{vOff}, v{vCL}, 4, v{vOff}')
    for t in range(2):
        for k in range(5):
            r = RAW + (t * 5 + k) * 4
            a(f'buffer_load_dwordx4 v[{r}:{r+3}], v{vOff}, s[{sX}:{sX+3}], s34 offen offset:{t*1280 + k*256}')
    a('s_waitcnt vmcnt(0)')
    st_.stamp()
    for t in range(2):
        for i in range(20):
            r = RAW + t * 20 + i; x = XF + t * 40 + 2 * i
            a(f'v_lshlrev_b32 v{x}, 16, v{r}')
            a(f'v_and_b32 v{x+1}, 0xffff0000, v{r}')
    for t in range(2):
        x = XF + t * 40
        a(f'v_pk_add_f32 v[{T+2*t}:{T+2*t+1}], v[{x}:{x+1}], v[{x+2}:{x+3}]')
        for i in range(2, 20):
            a(f'v_pk_add_f32 v[{T+2*t}:{T+2*t+1}], v[{T+2*t}:{T+2*t+1}], v[{x+2*i}:{x+2*i+1}]')
        a(f'v_add_f32 v{S+t}, v{T+2*t}, v{T+2*t+1}')
    for t in range(2): dpp_allreduce16(a, S + t, T)
    a(f's_mov_b32 s35, {0x3acccccd}')
    for t in range(2): a(f'v_mul_f32 v{S+t}, s35, v{S+t}')
    for t in range(2):
        x = XF + t * 40
        a(f'v_mov_b32 v{T+4}, v{S+t}')
        a(f'v_mov_b32 v{T+5}, v{S+t}')
        a(f'v_mov_b32 v{T+2*t}, 0')
        a(f'v_mov_b32 v{T+2*t+1}, 0')
        for i in range(20):
            a(f'v_pk_add_f32 v[{T+6}:{T+7}], v[{x+2*i}:{x+2*i+1}], v[{T+4}:{T+5}] neg_lo:[0,1] neg_hi:[0,1]')
            a(f'v_pk_fma_f32 v[{T+2*t}:{T+2*t+1}], v[{T+6}:{T+7}], v[{T+6}:{T+7}], v[{T+2*t}:{T+2*t+1}]')
        a(f'v_add_f32 v{S+2+t}, v{T+2*t}, v{T+2*t+1}')
    for t in range(2): dpp_allreduce16(a, S + 2 + t, T)
    for t in range(2):
        m, v = S + t, S + 2 + t
        a(f'v_mul_f32 v{v}, s35, v{v}')
        a(f'v_cvt_pk_bf16_f32 v{v}, v{v}, v{v}')
        a(f'v_and_b32 v{v}, 0xffff0000, v{v}')
        a(f'v_add_f32 v{v}, 0x3727c5ac, v{v}')
        a(f'v_cvt_pk_bf16_f32 v{v}, v{v}, v{v}')
        a(f'v_and_b32 v{v}, 0xffff0000, v{v}')
        a(f'v_sqrt_f32 v{v}, v{v}')
        a(f'v_cvt_pk_bf16_f32 v{v}, v{v}, v{v}')
        a(f'v_and_b32 v{v}, 0xffff0000, v{v}')
        a(f'v_rcp_f32 v{v}, v{v}')
        a(f'v_cvt_pk_bf16_f32 v{m}, v{m}, v{m}')
        a(f'v_and_b32 v{m}, 0xffff0000, v{m}')
    a(f'v_mov_b32 v{T}, v{S}')
    a(f'v_mov_b32 v{T+1}, v{S+2}')
    a(f'v_mov_b32 v{T+2}, v{S+1}')
    a(f'v_mov_b32 v{T+3}, v{S+3}')
    a(f'v_lshlrev_b32 v{T+4}, 4, v{vTG}')
    a(f'v_cmp_eq_u32 vcc, 0, v{vCL}')
    a(f'v_mov_b32 v{T+5}, 0x7f000000')
    a(f'v_cndmask_b32 v{T+4}, v{T+5}, v{T+4}, vcc')
    a(f's_lshl_b32 s36, s33, 3')
    a(f'buffer_store_dwordx4 v[{T}:{T+3}], v{T+4}, s[{sSTAT}:{sSTAT+3}], s36 offen')
    a(f'v_mul_f32 v{S+4}, v{S}, v{S+2}')
    a(f'v_mul_f32 v{S+5}, v{S+1}, v{S+3}')
    a(f'v_mul_u32_u24 v{T+8}, {130*4}, v{vCL}')
    a(f'v_lshl_add_u32 v{T+8}, v{vTG}, 2, v{T+8}')
    a(f's_lshl_b32 s37, s{s_wave}, 4')
    a(f'v_add_u32 v{T+8}, s37, v{T+8}')
    for k in range(5):
        for e in range(8):
            x0 = XF + k * 8 + e; x1 = XF + 40 + k * 8 + e
            a(f'v_fma_f32 v{T}, v{x0}, v{S+2}, -v{S+4}')
            a(f'v_fma_f32 v{T+1}, v{x1}, v{S+3}, -v{S+5}')
            a(f'v_cvt_pk_bf16_f32 v{T+2+(e&1)}, v{T}, v{T+1}')
            a(f'ds_write_b32 v{T+8}, v{T+2+(e&1)} offset:{(2080*k + 16*e)*4}')
    a('s_waitcnt lgkmcnt(0)')
    a('s_barrier')
    st_.stamp()
    a(f'v_lshrrev_b32 v{T}, 2, v2')
    a(f'v_and_b32 v{T+1}, 3, v2')
    a(f's_mul_i32 s38, s{s_wave}, 160')
    a(f'v_add_u32 v{T}, s38, v{T}')
    a(f'v_lshrrev_b32 v{T+2}, 3, v{T}')
    a(f'v_lshlrev_b32 v{T+2}, 1, v{T+2}')
    a(f'v_lshl_add_u32 v{T+2}, v{T}, 4, v{T+2}')
    a(f'v_lshl_add_u32 v{T+2}, v{T+1}, 2, v{T+2}')
    a(f'v_lshlrev_b32 v{T+2}, 2, v{T+2}')
    a(f'v_lshlrev_b32 v{T+3}, 12, v{T}')
    a(f'v_lshl_add_u32 v{T+3}, v{T+1}, 4, v{T+3}')
    a(f's_lshl_b32 s39, s2, 6')
    for it in range(10):
        r = XF + 4 * it
        a(f'ds_read_b64 v[{r}:{r+1}], v{T+2} offset:{it*1040}')
        a(f'ds_read_b64 v[{r+2}:{r+3}], v{T+2} offset:{it*1040 + 8}')
    for it in range(10):
        r = XF + 4 * it
        a(f's_waitcnt lgkmcnt({min(15, 2*(9-it))})')
        if it > 0: a(f's_add_u32 s39, s39, {16*4096}')
        a(f'buffer_store_dwordx4 v[{r}:{r+3}], v{T+3}, s[{sXNT}:{sXNT+3}], s39 offen')
    st_.stamp()
    a('s_waitcnt vmcnt(0)')
    st_.stamp(); st_.stamp(True)
    st_.dump(4, 5, s_wave)
    a('L_ln_end:')
    a('s_endpgm')
    return a.lines, 148

if __name__ == '__main__':
    import sys
    lines, vg = gen_ln(stamps=len(sys.argv) > 1)
    txt = assemble_file([('ln_kernel', lines, vg, 102, None)], [('ln_kernel', 64, 256, LN_LDS)])
    open('ln.s', 'w').write(txt)
    print(vg, LN_LDS)
```

```python
from common import *

WP_LDS = 40960

def gen_wprep(name='wprep_kernel', stamps=False):
    a = Asm()
    sW1, sW2, sW2F, sCS = 8, 12, 16, 20
    s_wave = 32
    a(f's_cmp_ge_u32 s2, 81')
    a('s_cbranch_scc1 L_wp_end')
    a(f's_load_dwordx2 s[4:5], s[0:1], {KA["ws"]}')
    a(f's_load_dwordx2 s[6:7], s[0:1], {KA["w1"]}')
    a(f's_load_dwordx2 s[40:41], s[0:1], {KA["w2"]}')
    a('v_lshrrev_b32 v1, 6, v0')
    a('v_and_b32 v2, 63, v0')
    a(f'v_readfirstlane_b32 s{s_wave}, v1')
    a('s_waitcnt lgkmcnt(0)')
    srd(a, sW1, 6, 7, D * F * 2)
    srd(a, sW2, 40, 41, F * D * 2)
    srd(a, sW2F, 4, 5, SZ_W2F, WS_W2F)
    srd(a, sCS, 4, 5, SZ_CS, WS_CS)
    a('s_cmp_ge_u32 s2, 54')
    a('s_cbranch_scc1 L_wp_cs')
    a('s_mul_i32 s33, s2, 40960')
    a(f'v_lshlrev_b32 v3, 4, v2')
    a(f's_mul_i32 s34, s{s_wave}, 10240')
    for i in range(10):
        a(f's_add_u32 s35, s34, {1024*i}')
        a('s_mov_b32 m0, s35')
        a('s_add_u32 s36, s33, s35')
        a(f'buffer_load_dwordx4 v3, s[{sW2}:{sW2+3}], s36 offen lds')
    a('v_lshrrev_b32 v4, 2, v2')
    a('v_mul_u32_u24 v4, 1280, v4')
    a('v_and_b32 v5, 3, v2')
    a('v_lshl_add_u32 v4, v5, 3, v4')
    a(f's_mul_i32 s35, s{s_wave}, 320')
    a('v_add_u32 v4, s35, v4')
    a('s_waitcnt vmcnt(0)')
    a('s_barrier')
    for i in range(10):
        r = 8 + 4 * i
        a(f'ds_read_b64_tr_b16 v[{r}:{r+1}], v4 offset:{32*i}')
        a(f'ds_read_b64_tr_b16 v[{r+2}:{r+3}], v4 offset:{32*i + 16*1280}')
    a('s_waitcnt lgkmcnt(0)')
    for i in range(10):
        r = 8 + 4 * i
        a(f's_lshl_b32 s35, s{s_wave}, 1')
        a(f's_add_u32 s35, s35, {i//5}')
        a('s_mul_i32 s35, s35, 54')
        a('s_add_u32 s35, s35, s2')
        a('s_mul_i32 s35, s35, 5120')
        a(f's_add_u32 s35, s35, {(i%5)*1024}')
        a(f'buffer_store_dwordx4 v[{r}:{r+3}], v3, s[{sW2F}:{sW2F+3}], s35 offen')
    a('s_waitcnt vmcnt(0)')
    a('s_endpgm')
    a('L_wp_cs:')
    a('s_sub_u32 s33, s2, 54')
    a('s_lshl_b32 s33, s33, 7')
    a('v_and_b32 v3, 7, v0')
    a('v_lshrrev_b32 v4, 3, v0')
    a(f'v_mul_u32_u24 v5, {20*3456}, v4')
    a('v_lshl_add_u32 v5, v3, 4, v5')
    for i in range(20):
        r = 16 + 4 * i
        a(f's_add_u32 s34, s33, {i*3456}')
        a(f'buffer_load_dwordx4 v[{r}:{r+3}], v5, s[{sW1}:{sW1+3}], s34 offen')
    for i in range(8): a(f'v_mov_b32 v{8+i}, 0')
    a('s_waitcnt vmcnt(0)')
    for i in range(20):
        for j in range(4):
            r = 16 + 4 * i + j
            a(f'v_lshlrev_b32 v6, 16, v{r}')
            a(f'v_and_b32 v7, 0xffff0000, v{r}')
            a(f'v_pk_add_f32 v[{8+2*j}:{9+2*j}], v[{8+2*j}:{9+2*j}], v[6:7]')
    a('v_lshlrev_b32 v5, 8, v4')
    a('v_lshl_add_u32 v5, v3, 5, v5')
    a('ds_write_b128 v5, v[8:11]')
    a('ds_write_b128 v5, v[12:15] offset:16')
    a('s_waitcnt lgkmcnt(0)')
    a('s_barrier')
    a('v_cmp_gt_u32 vcc, 64, v0')
    a('s_and_saveexec_b64 s[38:39], vcc')
    a('s_cbranch_execz L_wp_end')
    a('v_lshlrev_b32 v5, 2, v0')
    for i in range(32):
        a(f'ds_read_b32 v{16+i}, v5 offset:{256*i}')
    a('s_waitcnt lgkmcnt(0)')
    for i in range(1, 32):
        a(f'v_add_f32 v16, v16, v{16+i}')
    a('s_lshl_b32 s33, s33, 1')
    a(f'buffer_store_dword v16, v5, s[{sCS}:{sCS+3}], s33 offen')
    a('s_waitcnt vmcnt(0)')
    a('L_wp_end:')
    a('s_endpgm')
    return a.lines, 100

if __name__ == '__main__':
    lines, vg = gen_wprep()
    txt = assemble_file([('wprep_kernel', lines, vg, 102, None)], [('wprep_kernel', 81, 256, WP_LDS)])
    open('wprep.s', 'w').write(txt)
```

```python
import sys
from common import *
import k_ln, k_wprep, k_kgen, k_g1, k_conv, k_g2

def build(stamps=False, extra_empty=0):
    ks = []; ls = []
    l, vg = k_ln.gen_ln(stamps=stamps);       ks.append(('ln_kernel', l, vg, 102, None));    ls.append(('ln_kernel', 64, 256, k_ln.LN_LDS))
    l, vg = k_wprep.gen_wprep();              ks.append(('wprep_kernel', l, vg, 102, None)); ls.append(('wprep_kernel', 81, 256, k_wprep.WP_LDS))
    l, vg = k_kgen.gen_kgen(stamps=stamps);   ks.append(('kgen_kernel', l, vg, 102, None));  ls.append(('kgen_kernel', 160, 256, 4 * k_kgen.KG_WAVE))
    l, vg = k_g1.gen_g1(stamps=stamps);       ks.append(('g1_kernel', l, vg, 102, None));    ls.append(('g1_kernel', 256, 256, k_g1.G1_LDS))
    l, vg = k_conv.gen_conv(stamps=stamps);   ks.append(('conv_kernel', l, vg, 102, None));  ls.append(('conv_kernel', 160, 256, 4 * k_conv.CV_WAVE))
    l, vg = k_g2.gen_g2(stamps=stamps);       ks.append(('g2_kernel', l, vg, 102, None));    ls.append(('g2_kernel', 256, 256, k_g2.G2_LDS))
    if extra_empty:
        ks.append(('empty_kernel', ['s_endpgm'], 8, 16, None))
        for i in range(extra_empty): ls.append(('empty_kernel', 256, 256, 0))
    return assemble_file(ks, ls)

if __name__ == '__main__':
    out = sys.argv[1]
    stamps = len(sys.argv) > 2 and sys.argv[2] == '1'
    extra = int(sys.argv[3]) if len(sys.argv) > 3 else 0
    open(out, 'w').write(build(stamps, extra))
```

```python
from common import *
import struct
def f2u(x): return struct.unpack('<I', struct.pack('<f', x))[0]

G1_NS = 4
G1_STAGE = 32768
G1_X = 16384
G1_LDS = G1_NS * G1_STAGE

def gen_g1(name='g1_kernel', nwg=256, stamps=False, exp=''):
    a = Asm()
    st_ = Stamps(a, stamps)
    sX, sW, sH, sST, sCS, sB1 = 8, 12, 16, 20, 24, 28
    s_wave, s_rt, s_ct, s_t0, s_t1 = 32, 33, 34, 35, 36
    s_wbase, s_xbase = 40, 41
    a(f's_cmp_ge_u32 s2, {nwg}')
    a('s_cbranch_scc1 L_g1_end')
    st_.stamp(True); st_.stamp()
    a(f's_load_dwordx2 s[4:5], s[0:1], {KA["ws"]}')
    a(f's_load_dwordx2 s[6:7], s[0:1], {KA["x"]}')
    a(f's_load_dwordx4 s[44:47], s[0:1], {KA["w1"]}')
    a('v_lshrrev_b32 v1, 6, v0')
    a('v_and_b32 v2, 63, v0')
    a(f'v_readfirstlane_b32 s{s_wave}, v1')
    a(f's_and_b32 s{s_t0}, s2, 7')
    a(f's_lshr_b32 s{s_t1}, s2, 3')
    a(f's_lshr_b32 s{s_rt}, s{s_t0}, 1')
    a(f's_lshl_b32 s{s_rt}, s{s_rt}, 2')
    a(f's_and_b32 s37, s{s_t1}, 3')
    a(f's_add_u32 s{s_rt}, s{s_rt}, s37')
    a(f's_and_b32 s{s_ct}, s{s_t0}, 1')
    a(f's_lshl_b32 s{s_ct}, s{s_ct}, 3')
    a(f's_lshr_b32 s37, s{s_t1}, 2')
    a(f's_add_u32 s{s_ct}, s{s_ct}, s37')
    vWO = 4
    vXO = 8
    T = 9
    for j in range(4):
        a(f's_lshl_b32 s38, s{s_wave}, 6')
        a(f's_add_u32 s38, s38, {256*j}')
        a(f'v_add_u32 v{T}, s38, v2')
        a(f'v_mul_u32_u24 v{T+1}, 8739, v{T}')
        a(f'v_lshrrev_b32 v{T+1}, 20, v{T+1}')
        a(f'v_mul_u32_u24 v{T+2}, 120, v{T+1}')
        a(f'v_sub_u32 v{T+2}, v{T}, v{T+2}')
        a(f'v_mul_u32_u24 v{T+3}, 4682, v{T+2}')
        a(f'v_lshrrev_b32 v{T+3}, 16, v{T+3}')
        a(f'v_mul_u32_u24 v{T+4}, 14, v{T+3}')
        a(f'v_sub_u32 v{T+4}, v{T+2}, v{T+4}')
        a(f'v_lshl_add_u32 v{T+3}, v{T+1}, 3, v{T+3}')
        a(f'v_mul_u32_u24 v{T+3}, 3456, v{T+3}')
        a(f'v_lshl_add_u32 v{vWO+j}, v{T+4}, 4, v{T+3}')
        a(f'v_cmp_gt_u32 vcc, 112, v{T+2}')
        a(f'v_mov_b32 v{T+5}, 0x7f000000')
        a(f'v_cndmask_b32 v{vWO+j}, v{T+5}, v{vWO+j}, vcc')
        a(f'v_cmp_gt_u32 vcc, 960, v{T}')
        a(f'v_cndmask_b32 v{vWO+j}, v{T+5}, v{vWO+j}, vcc')
    a(f'v_lshrrev_b32 v{T}, 3, v2')
    a(f'v_and_b32 v{T+1}, 7, v2')
    a(f'v_xor_b32 v{T+1}, v{T+1}, v{T}')
    a(f'v_mul_u32_u24 v{T}, 1280, v{T}')
    a(f'v_lshl_add_u32 v{vXO}, v{T+1}, 4, v{T}')
    a('s_waitcnt lgkmcnt(0)')
    srd(a, sX, 6, 7, L * D * 2)
    srd(a, sW, 44, 45, D * F * 2)
    srd(a, sB1, 46, 47, F * 2)
    srd(a, sH, 4, 5, SZ_H, WS_H)
    srd(a, sST, 4, 5, SZ_STAT, WS_STAT)
    srd(a, sCS, 4, 5, SZ_CS, WS_CS)
    a(f's_mul_i32 s{s_wbase}, s{s_ct}, 224')
    a(f's_lshl_b32 s{s_xbase}, s{s_rt}, 7')
    a(f's_lshl_b32 s38, s{s_wave}, 5')
    a(f's_add_u32 s{s_xbase}, s{s_xbase}, s38')
    a(f's_mul_i32 s{s_xbase}, s{s_xbase}, 1280')
    a(f's_lshl_b32 s42, s{s_wave}, 10')
    a(f's_lshl_b32 s43, s{s_wave}, 12')
    def dma(stage):
        buf = (stage % G1_NS) * G1_STAGE
        a(f's_add_u32 s38, s{s_wbase}, {stage*64*3456}')
        for j in range(4):
            a(f's_add_u32 m0, s42, {buf + 4096*j}')
            a(f'buffer_load_dwordx4 v{vWO+j}, s[{sW}:{sW+3}], s38 offen lds')
        for j in range(4):
            a(f's_add_u32 s39, s{s_xbase}, {stage*128 + j*8*1280}')
            a(f's_add_u32 m0, s43, {buf + G1_X + 1024*j}')
            a(f'buffer_load_dwordx4 v{vXO}, s[{sX}:{sX+3}], s39 offen lds')
    for s in range(G1_NS): dma(s)
    st_.stamp()
    vA, vB0, vB1 = 16, 17, 18
    vAc, vB0c, vB1c = 19, 20, 21
    a(f'v_lshrrev_b32 v{T}, 4, v2')
    a(f'v_mul_u32_u24 v{vA}, 1920, v{T}')
    a(f'v_bfe_u32 v{T+1}, v2, 2, 2')
    a(f'v_mul_u32_u24 v{T+1}, 224, v{T+1}')
    a(f'v_add_u32 v{vA}, v{vA}, v{T+1}')
    a(f'v_and_b32 v{T+1}, 3, v2')
    a(f'v_lshl_add_u32 v{vA}, v{T+1}, 3, v{vA}')
    a(f'v_and_b32 v{T+1}, 15, v2')
    a(f's_lshl_b32 s38, s{s_wave}, 5')
    a(f'v_add_u32 v{T+2}, s38, v{T+1}')
    a(f'v_lshlrev_b32 v{T+2}, 7, v{T+2}')
    a(f'v_and_b32 v{T+3}, 7, v{T+1}')
    a(f'v_xor_b32 v{T+4}, v{T}, v{T+3}')
    a(f'v_lshl_add_u32 v{vB0}, v{T+4}, 4, v{T+2}')
    a(f'v_xor_b32 v{T+4}, 4, v{T+4}')
    a(f'v_lshl_add_u32 v{vB1}, v{T+4}, 4, v{T+2}')
    a(f'v_add_u32 v{vB0}, {G1_X}, v{vB0}')
    a(f'v_add_u32 v{vB1}, {G1_X}, v{vB1}')
    ACC = 24
    FR = 80
    for i in range(56): a(f'v_mov_b32 v{ACC+i}, 0')
    def set_stage(stage):
        buf = (stage % G1_NS) * G1_STAGE
        a(f'v_add_u32 v{vAc}, {buf}, v{vA}')
        a(f'v_add_u32 v{vB0c}, {buf}, v{vB0}')
        a(f'v_add_u32 v{vB1c}, {buf}, v{vB1}')
    def reads(j):
        st = j & 1; fb = FR + 36 * (j & 1)
        out = []
        vb = vB0c if st == 0 else vB1c
        for n in range(2):
            out.append(f'ds_read_b128 v[{fb+28+4*n}:{fb+31+4*n}], v{vb} offset:{2048*n}')
        for aa in range(7):
            for t in range(2):
                out.append(f'ds_read_b64_tr_b16 v[{fb+4*aa+2*t}:{fb+4*aa+2*t+1}], v{vAc} offset:{7680*st + 896*t + 32*aa}')
        return out
    vST = 152
    vCS = 156
    vBB = 184
    def side_loads():
        a(f'v_and_b32 v{T}, 15, v2')
        a(f'v_lshlrev_b32 v{T}, 3, v{T}')
        a(f's_lshl_b32 s38, s{s_rt}, 7')
        a(f's_lshl_b32 s39, s{s_wave}, 5')
        a('s_add_u32 s38, s38, s39')
        a('s_lshl_b32 s38, s38, 3')
        for n in range(2):
            a(f'buffer_load_dwordx2 v[{vST+2*n}:{vST+2*n+1}], v{T}, s[{sST}:{sST+3}], s38 offen offset:{128*n}')
        a(f'v_lshrrev_b32 v{T+1}, 4, v2')
        a(f'v_lshlrev_b32 v{T+2}, 4, v{T+1}')
        a(f'v_lshlrev_b32 v{T+3}, 3, v{T+1}')
        a(f's_mul_i32 s38, s{s_ct}, 448')
        a(f's_mul_i32 s39, s{s_ct}, 224')
        for aa in range(7):
            a(f'buffer_load_dwordx4 v[{vCS+4*aa}:{vCS+4*aa+3}], v{T+2}, s[{sCS}:{sCS+3}], s38 offen offset:{64*aa}')
            a(f'buffer_load_dwordx2 v[{vBB+2*aa}:{vBB+2*aa+1}], v{T+3}, s[{sB1}:{sB1+3}], s39 offen offset:{32*aa}')
    NSIDE = 16
    a(f's_waitcnt vmcnt({8*(G1_NS-1)})')
    a('s_barrier')
    st_.stamp()
    set_stage(0)
    for x in reads(0): a(x)
    for j in range(20):
        k = j >> 1
        fb = FR + 36 * (j & 1)
        a('s_waitcnt lgkmcnt(0)')
        if j & 1:
            if k + 1 < 10:
                issued = min(10, k + G1_NS)
                younger = issued - (k + 2)
                extra = NSIDE if (side_done) else 0
                if 'nodma' not in exp: a(f's_waitcnt vmcnt({min(63, 8*younger + extra)})')
                a('s_barrier')
                if k + G1_NS < 10 and 'nodma' not in exp: dma(k + G1_NS)
                set_stage(k + 1)
        side_done = False if j == 0 else side_done
        nxt = reads(j + 1) if j + 1 < 20 else []
        if 'noreads' in exp: nxt = []
        if 'notr' in exp: nxt = nxt[:2]
        if 'nob' in exp: nxt = nxt[2:]
        kk = 0
        i = 0
        for aa in range(7):
            for n in range(2):
                c = ACC + (aa * 2 + n) * 4
                a(f'v_mfma_f32_16x16x32_bf16 v[{c}:{c+3}], v[{fb+4*aa}:{fb+4*aa+3}], v[{fb+28+4*n}:{fb+31+4*n}], v[{c}:{c+3}]')
                if kk < len(nxt): a(nxt[kk]); kk += 1
                if kk < len(nxt) and i % 7 == 6: a(nxt[kk]); kk += 1
                i += 1
        while kk < len(nxt): a(nxt[kk]); kk += 1
        if j == 13:
            side_loads(); side_done = True
    st_.stamp()
    a('s_waitcnt vmcnt(0)')
    kk_ = 2.0 * 0.7978845608028654 * 1.4426950408889634
    E = FR
    C0, C1, ONE = FR + 56, FR + 58, FR + 60
    for i in range(2):
        a(f'v_mov_b32 v{C0+i}, {f2u(-kk_)}')
        a(f'v_mov_b32 v{C1+i}, {f2u(-kk_ * 0.044715)}')
        a(f'v_mov_b32 v{ONE+i}, 1.0')
    OUT = FR + 24
    for n in range(2):
        m, r = vST + 2 * n, vST + 2 * n + 1
        a(f'v_mov_b32 v{E+16+4*n}, v{m}'); a(f'v_mov_b32 v{E+17+4*n}, v{m}')
        a(f'v_mov_b32 v{E+18+4*n}, v{r}'); a(f'v_mov_b32 v{E+19+4*n}, v{r}')
    for aa in range(7):
        b = vBB + 2 * aa
        a(f'v_lshlrev_b32 v{E+8}, 16, v{b}')
        a(f'v_and_b32 v{E+9}, 0xffff0000, v{b}')
        a(f'v_lshlrev_b32 v{E+10}, 16, v{b+1}')
        a(f'v_and_b32 v{E+11}, 0xffff0000, v{b+1}')
        for n in range(2):
            mm = E + 16 + 4 * n; rr = mm + 2
            for h in range(2):
                c = ACC + (aa * 2 + n) * 4 + 2 * h
                cs = vCS + 4 * aa + 2 * h
                bb = E + 8 + 2 * h
                u = E + 2 * h * 2
                z = E + 4 * h; p = z + 2
                a(f'v_pk_fma_f32 v[{c}:{c+1}], v[{mm}:{mm+1}], v[{cs}:{cs+1}], v[{c}:{c+1}] neg_lo:[1,0,0] neg_hi:[1,0,0]')
                a(f'v_pk_fma_f32 v[{c}:{c+1}], v[{c}:{c+1}], v[{rr}:{rr+1}], v[{bb}:{bb+1}]')
            for h in range(2):
                c = ACC + (aa * 2 + n) * 4 + 2 * h
                z = E + 4 * h; p = z + 2
                a(f'v_pk_mul_f32 v[{p}:{p+1}], v[{c}:{c+1}], v[{c}:{c+1}]')
            for h in range(2):
                c = ACC + (aa * 2 + n) * 4 + 2 * h
                z = E + 4 * h; p = z + 2
                a(f'v_pk_fma_f32 v[{p}:{p+1}], v[{p}:{p+1}], v[{C1}:{C1+1}], v[{C0}:{C0+1}]')
            for h in range(2):
                c = ACC + (aa * 2 + n) * 4 + 2 * h
                z = E + 4 * h; p = z + 2
                a(f'v_pk_mul_f32 v[{z}:{z+1}], v[{p}:{p+1}], v[{c}:{c+1}]')
            for h in range(2):
                z = E + 4 * h
                a(f'v_exp_f32 v{z}, v{z}'); a(f'v_exp_f32 v{z+1}, v{z+1}')
            for h in range(2):
                z = E + 4 * h
                a(f'v_pk_add_f32 v[{z}:{z+1}], v[{z}:{z+1}], v[{ONE}:{ONE+1}]')
            for h in range(2):
                z = E + 4 * h
                a(f'v_rcp_f32 v{z}, v{z}'); a(f'v_rcp_f32 v{z+1}, v{z+1}')
            for h in range(2):
                c = ACC + (aa * 2 + n) * 4 + 2 * h
                z = E + 4 * h
                a(f'v_pk_mul_f32 v[{c}:{c+1}], v[{c}:{c+1}], v[{z}:{z+1}]')
            for h in range(2):
                c = ACC + (aa * 2 + n) * 4 + 2 * h
                a(f'v_cvt_pk_bf16_f32 v{OUT + (aa*2+n)*2 + h}, v{c}, v{c+1}')
    st_.stamp()
    vL16 = E; vL16h = E + 1
    a(f'v_lshlrev_b32 v{vL16}, 4, v2')
    a(f's_lshl_b32 s38, s{s_rt}, 1')
    a(f's_lshr_b32 s39, s{s_wave}, 1')
    a('s_add_u32 s38, s38, s39')
    a(f's_mul_i32 s38, s38, {54*4096}')
    a(f's_and_b32 s39, s{s_wave}, 1')
    a('s_lshl_b32 s39, s39, 11')
    a('s_add_u32 s38, s38, s39')
    a(f's_mul_i32 s39, s{s_ct}, 7')
    a('s_lshr_b32 s52, s39, 1')
    a('s_lshl_b32 s53, s52, 12')
    a('s_add_u32 s38, s38, s53')
    a(f's_bitcmp1_b32 s{s_ct}, 0')
    a('s_cbranch_scc1 L_g1_odd')
    PK = E + 4
    def store_pair(a0, a1, srel, n):
        t = PK + 4 * n
        o0 = OUT + (a0 * 2 + n) * 2; o1 = OUT + (a1 * 2 + n) * 2
        a(f'v_mov_b32 v{t}, v{o0}'); a(f'v_mov_b32 v{t+1}, v{o0+1}')
        a(f'v_mov_b32 v{t+2}, v{o1}'); a(f'v_mov_b32 v{t+3}, v{o1+1}')
        a(f's_add_u32 s53, s38, {srel*4096 + n*1024}')
        a(f'buffer_store_dwordx4 v[{t}:{t+3}], v{vL16}, s[{sH}:{sH+3}], s53 offen')
    def store_half(a0, half, srel, n):
        o0 = OUT + (a0 * 2 + n) * 2
        a(f's_add_u32 s53, s38, {srel*4096 + n*1024}')
        a(f'buffer_store_dwordx2 v[{o0}:{o0+1}], v{vL16}, s[{sH}:{sH+3}], s53 offen offset:{8*half}')
    for i in range(3):
        for n in range(2): store_pair(2 * i, 2 * i + 1, i, n)
    for n in range(2): store_half(6, 0, 3, n)
    a('s_branch L_g1_stored')
    a('L_g1_odd:')
    for n in range(2): store_half(0, 1, 0, n)
    for n in range(2): store_pair(1, 2, 1, n)
    a(f's_cmp_eq_u32 s{s_ct}, 15')
    a('s_cbranch_scc1 L_g1_stored')
    for i in range(1, 3):
        for n in range(2): store_pair(2 * i + 1, 2 * i + 2, i + 1, n)
    a('L_g1_stored:')
    st_.stamp()
    a('s_waitcnt vmcnt(0)')
    st_.stamp(); st_.stamp(True)
    st_.dump(4, 5, s_wave)
    a('L_g1_end:')
    a('s_endpgm')
    return a.lines, 200

if __name__ == '__main__':
    import sys
    for e in ('', 'nodma', 'noreads', 'notr', 'nodma_noreads', 'nob', 'nodma_nob'):
        lines, vg = gen_g1(stamps=True, exp=e)
        txt = assemble_file([('g1_kernel', lines, vg, 102, None)], [('g1_kernel', 256, 256, G1_LDS)])
        open(f'g1_{e}.s', 'w').write(txt)
    print(vg, G1_LDS)
```
